```python
import torch

def _softmax(x, axis=-1):
    return torch.softmax(x, dim=axis)
def _gelu(x):
    return torch.nn.functional.gelu(x, approximate="tanh")
def _silu(x):
    return torch.nn.functional.silu(x)
def _sigmoid(x):
    return torch.sigmoid(x)
def _layernorm(x, axis=-1, eps=1e-5):
    m = x.mean(dim=axis, keepdim=True)
    v = x.var(dim=axis, keepdim=True, unbiased=False)
    return (x - m) / torch.sqrt(v + eps)
def _scatter_add(tgt, idx, src, axis=0):
    return tgt.clone().index_add_(axis, idx, src)
def _segment_sum(src, seg, n):
    out = torch.zeros((n,) + src.shape[1:], dtype=src.dtype)
    return out.index_add_(0, seg, src)
def _pad(x, pw):
    flat = tuple(v for pair in reversed(pw) for v in pair)
    return torch.nn.functional.pad(x, flat)

kernel_name = 'gated_mix__ssm_conv_s4d__dense_activation_silu__prompt'

def setup_inputs():

    _w = (lambda a: (lambda t: t.to(torch.bfloat16) if t.is_floating_point() else t)(torch.as_tensor(a)))
    def _A_setup():
        Bsz, L, D, N = 1, 2048, 640, 128
        return {
            "u": _w((lambda *s: torch.randn(*s, dtype=torch.bfloat16) * 0.05)(Bsz, L, D)),
            "log_A_real": _w((lambda *s: torch.randn(*s, dtype=torch.bfloat16) * 3.2)(D, N) * 0.5),
            "A_imag": _w((lambda *s: torch.randn(*s, dtype=torch.bfloat16) * 0.05)(D, N) * 3.14),
            "C_real": _w((lambda *s: torch.randn(*s, dtype=torch.bfloat16) * 0.1)(D, N) / N ** 0.5),
            "C_imag": _w((lambda *s: torch.randn(*s, dtype=torch.bfloat16) * 0.1)(D, N) / N ** 0.5),
            "log_dt": _w((lambda *s: torch.randn(*s, dtype=torch.bfloat16) * 0.05)(D) * 0.5 - 4.0),
            "D_skip": _w((lambda *s: torch.randn(*s, dtype=torch.bfloat16) * 0.05)(D)),
        }
    _A_in = _A_setup()

    def _B_setup():
        B, S, D, F = 1, 2048, 640, 1728
        return {
            "x": _w((lambda *s: torch.randn(*s, dtype=torch.bfloat16) * 0.05)(B, S, D)),
            "w1": _w((lambda *s: torch.randn(*s, dtype=torch.bfloat16) * 3.2)(D, F) * (D ** -0.5)),
            "w2": _w((lambda *s: torch.randn(*s, dtype=torch.bfloat16) * 0.1)(F, D) * (F ** -0.5)),
        }
    _B_in = _B_setup()

    return {
        "A_u": _A_in["u"],
        "A_log_A_real": _A_in["log_A_real"],
        "A_A_imag": _A_in["A_imag"],
        "A_C_real": _A_in["C_real"],
        "A_C_imag": _A_in["C_imag"],
        "A_log_dt": _A_in["log_dt"],
        "A_D_skip": _A_in["D_skip"],
        "B_x": _B_in["x"],
        "B_w1": _B_in["w1"],
        "B_w2": _B_in["w2"],
        "gate_w": _w((lambda *s: torch.randn(*s, dtype=torch.bfloat16) * 0.05)(640) * 16.0),
    }

def reference(A_u, A_log_A_real, A_A_imag, A_C_real, A_C_imag, A_log_dt, A_D_skip, B_x, B_w1, B_w2, gate_w):
    def _A_ref(u, log_A_real, A_imag, C_real, C_imag, log_dt, D_skip):
        L = u.shape[1]
        dt = torch.exp(log_dt)
        A = -torch.exp(log_A_real) + 1j * A_imag
        C = (C_real + 1j * C_imag) * dt[:, None]
        pos = (lambda x, dt: x.to(dt))(torch.arange(L), log_dt.dtype)
        P = torch.exp((A * dt[:, None])[:, :, None] * pos[None, None, :])
        K = 2.0 * torch.einsum("dn,dnl->dl", C, P).real
        L2 = 2 * L
        u_t = (lambda x, *d: x.permute(*d))(u, 0, 2, 1)
        Kf = (lambda x, *a, **k: torch.fft.rfft(x.float(), *a, **k))(K, L2)
        Uf = (lambda x, *a, **k: torch.fft.rfft(x.float(), *a, **k))(u_t, L2)
        y = (lambda x, *a, **k: torch.fft.irfft(x, *a, **k).to(torch.bfloat16))(Uf * Kf[None, :, :], L2)[:, :, :L]
        y = (lambda x, *d: x.permute(*d))(y, 0, 2, 1)
        return y + u * D_skip[None, None, :]

    def _B_ref(x, w1, w2):
        h = torch.einsum("bsd,df->bsf", x, w1)
        h = _silu(h)
        out = torch.einsum("bsf,fd->bsd", h, w2)
        return out

    x = A_u
    g = _sigmoid((x * gate_w).sum(-1, keepdims=True))
    a = _A_ref(x, A_log_A_real, A_A_imag, A_C_real, A_C_imag, A_log_dt, A_D_skip)
    b = _B_ref(x, B_w1, B_w2)
    return g * a + (1 - g) * b
```

```python
class Asm:
    def __init__(self):
        self.lines = []
        self._lbl = 0
    def __call__(self, s, *a):
        self.lines.append("    " + (s % a if a else s))
    def raw(self, s):
        self.lines.append(s)
    def label(self, name):
        self.lines.append(name + ":")
    def newlabel(self, pfx="L"):
        self._lbl += 1
        return "%s_%d" % (pfx, self._lbl)
    def comment(self, s):
        self.lines.append("    ; " + s)
    def text(self):
        return "\n".join(self.lines) + "\n"

class Regs:
    def __init__(self, start=0, limit=256):
        self.next = start; self.limit = limit; self.hi = start
    def alloc(self, n=1, align=1):
        b = (self.next + align - 1) // align * align
        self.next = b + n
        self.hi = max(self.hi, self.next)
        assert self.next <= self.limit, "out of registers"
        return b
    def mark(self): return self.next
    def release(self, m): self.next = m

def vr(b, n=1):
    return "v%d" % b if n == 1 else "v[%d:%d]" % (b, b + n - 1)
def sr(b, n=1):
    return "s%d" % b if n == 1 else "s[%d:%d]" % (b, b + n - 1)

def f32bits(x):
    import struct
    return struct.unpack("<I", struct.pack("<f", x))[0]
def hexf(x):
    return "0x%08x" % f32bits(x)

def kernel_header(name):
    return (".globl %s\n.p2align 8\n.type %s,@function\n%s:\n" % (name, name, name))
def kernel_desc(name, vgpr, sgpr=102, lds=0):
    acc = (vgpr + 3) // 4 * 4
    return (".amdhsa_kernel %s\n  .amdhsa_next_free_vgpr %d\n  .amdhsa_next_free_sgpr %d\n  .amdhsa_accum_offset %d\n"
            "  .amdhsa_group_segment_fixed_size 0\n  .amdhsa_kernarg_size 112\n  .amdhsa_user_sgpr_count 2\n"
            "  .amdhsa_user_sgpr_kernarg_segment_ptr 1\n  .amdhsa_system_sgpr_workgroup_id_x 1\n.end_amdhsa_kernel\n" % (name, vgpr, sgpr, acc))
```

```python
from asmlib import *
from gemm import srd, KARG, WS_AT, WS_G
import math

KTB = 0
KPITCH = 144
UCB = 9216
UCP = 4240 + 16
PKB = UCB + 4 * UCP
PKS = 648 * 4
KDB = PKB + 4 * PKS
REDB = PKB
CONV_LDS = REDB + 32768

LOG2E = 1.4426950408889634
INV2PI = 0.15915494309189535

def cexp(a, dr, di, vlr, vw, p_sreg_or_imm, t):
    a("v_mul_f32 %s, %s, %s", vr(t), p_sreg_or_imm, vr(vlr))
    a("v_mul_f32 %s, %s, %s", vr(t + 1), p_sreg_or_imm, vr(vw))
    a("v_exp_f32 %s, %s", vr(t), vr(t))
    a("v_fract_f32 %s, %s", vr(t + 1), vr(t + 1))
    a("v_cos_f32 %s, %s", vr(t + 2), vr(t + 1))
    a("v_sin_f32 %s, %s", vr(t + 1), vr(t + 1))
    a("s_nop 0")
    a("v_mul_f32 %s, %s, %s", vr(dr), vr(t), vr(t + 2))
    a("v_mul_f32 %s, %s, %s", vr(di), vr(t), vr(t + 1))

def csq(a, dr, di, xr, xi, t):
    a("v_mul_f32 %s, %s, %s", vr(t), vr(xi), vr(xi))
    a("v_add_f32 %s, %s, %s", vr(t + 1), vr(xr), vr(xr))
    a("v_fma_f32 %s, %s, %s, -%s", vr(dr), vr(xr), vr(xr), vr(t))
    a("v_mul_f32 %s, %s, %s", vr(di), vr(t + 1), vr(xi))

def cmul(a, dr, di, ar, ai, br, bi):
    a("v_mul_f32 %s, %s, %s", vr(dr), vr(ar), vr(br))
    a("v_mul_f32 %s, %s, %s", vr(di), vr(ar), vr(bi))
    a("v_fma_f32 %s, -%s, %s, %s", vr(dr), vr(ai), vr(bi), vr(dr))
    a("v_fma_f32 %s, %s, %s, %s", vr(di), vr(ai), vr(br), vr(di))

def split_pair(a, hi, lo, x0, x1, t):
    a("v_cvt_pk_bf16_f32 %s, %s, %s", vr(hi), vr(x0), vr(x1))
    a("v_lshlrev_b32 %s, 16, %s", vr(t), vr(hi))
    a("v_and_b32 %s, 0xffff0000, %s", vr(t + 1), vr(hi))
    a("v_sub_f32 %s, %s, %s", vr(t), vr(x0), vr(t))
    a("v_sub_f32 %s, %s, %s", vr(t + 1), vr(x1), vr(t + 1))
    a("v_cvt_pk_bf16_f32 %s, %s, %s", vr(lo), vr(t), vr(t + 1))

def gen_conv_body(a, wg_sreg):
    R = Regs(1, 256); S = Regs(16, 100)
    sU, sP0, sP1, sW = 4, 8, 12, S.alloc(4, 4)
    sP2 = S.alloc(4, 4); sP3 = S.alloc(4, 4); sP4 = S.alloc(4, 4)
    ptr = S.alloc(16, 4)
    a("s_load_dwordx16 %s, s[0:1], 0", sr(ptr, 16))
    pws = S.alloc(2, 2)
    a("s_load_dwordx2 %s, s[0:1], %d", sr(pws, 2), KARG['ws'])
    a("s_waitcnt lgkmcnt(0)")
    srd(a, sU, sr(ptr), sr(ptr + 1), 2048 * 640 * 2)
    srd(a, sP0, sr(ptr + 2), sr(ptr + 3), 640 * 128 * 2)
    srd(a, sP1, sr(ptr + 4), sr(ptr + 5), 640 * 128 * 2)
    srd(a, sP2, sr(ptr + 6), sr(ptr + 7), 640 * 128 * 2)
    srd(a, sP3, sr(ptr + 8), sr(ptr + 9), 640 * 128 * 2)
    srd(a, sP4, sr(ptr + 10), sr(ptr + 11), 640 * 2)
    srd(a, sW, sr(pws), sr(pws + 1), WS_AT + 640 * 2048 * 2)
    s_d = wg_sreg
    vlane = R.alloc(); vt = R.alloc(8, 2)
    s_wave = S.alloc(); s_t0 = S.alloc(); s_t1 = S.alloc()
    a("v_and_b32 %s, 63, v0", vr(vlane))
    a("v_lshrrev_b32 %s, 6, v0", vr(vt)); a("s_nop 0")
    a("v_readfirstlane_b32 %s, %s", sr(s_wave), vr(vt)); a("s_nop 4")
    vu = R.alloc(8)
    a("v_mul_u32_u24 %s, 1280, v0", vr(vt))
    a("s_lshl_b32 %s, %s, 1", sr(s_t0), sr(s_d))
    for i in range(8):
        a("s_add_u32 %s, %s, %d", sr(s_t1), sr(s_t0), i * 256 * 1280)
        a("buffer_load_ushort %s, %s, %s, %s offen", vr(vu + i), vr(vt), sr(sU, 4), sr(s_t1))
    vp = R.alloc(32)
    a("v_lshrrev_b32 %s, 4, %s", vr(vt), vr(vlane))
    a("v_lshlrev_b32 %s, 3, %s", vr(vt), vr(vt))
    a("s_lshl_b32 %s, %s, 8", sr(s_t0), sr(s_d))
    a("s_lshl_b32 %s, %s, 6", sr(s_t1), sr(s_wave))
    a("s_add_u32 %s, %s, %s", sr(s_t0), sr(s_t0), sr(s_t1))
    for ar_i, srdp in enumerate((sP0, sP1, sP2, sP3)):
        for s_ in range(2):
            a("buffer_load_dwordx2 %s, %s, %s, %s offen offset:%d", vr(vp + ar_i * 8 + s_ * 4, 2) if False else vr(vt + 2 + 0, 2), vr(vt), sr(srdp, 4), sr(s_t0), s_ * 32)
            a("s_waitcnt vmcnt(0)")
            for i in range(2):
                a("v_lshlrev_b32 %s, 16, %s", vr(vp + ar_i * 8 + s_ * 4 + 2 * i), vr(vt + 2 + i))
                a("v_and_b32 %s, 0xffff0000, %s", vr(vp + ar_i * 8 + s_ * 4 + 2 * i + 1), vr(vt + 2 + i))
    vdt = R.alloc(); vdsk = R.alloc()
    a("v_mov_b32 %s, 0", vr(vt))
    a("s_lshl_b32 %s, %s, 1", sr(s_t0), sr(s_d))
    a("buffer_load_ushort %s, %s, %s, %s offen", vr(vdt), vr(vt), sr(sP4, 4), sr(s_t0))
    srd(a, sP4, sr(ptr + 12), sr(ptr + 13), 640 * 2)
    a("buffer_load_ushort %s, %s, %s, %s offen", vr(vdsk), vr(vt), sr(sP4, 4), sr(s_t0))
    a("s_waitcnt vmcnt(0)")
    a("v_lshlrev_b32 %s, 16, %s", vr(vdsk), vr(vdsk))
    a("v_lshlrev_b32 %s, 16, %s", vr(vdt), vr(vdt))
    a("v_mul_f32 %s, %s, %s", vr(vdt), hexf(LOG2E), vr(vdt))
    a("v_exp_f32 %s, %s", vr(vdt), vr(vdt)); a("s_nop 0")
    a("v_cvt_pk_bf16_f32 %s, %s, %s", vr(vdt), vr(vdt), vr(vdt)); a("v_lshlrev_b32 %s, 16, %s", vr(vdt), vr(vdt))
    z4 = R.alloc(4, 4)
    for i in range(4): a("v_mov_b32 %s, 0", vr(z4 + i))
    a("v_lshlrev_b32 %s, 4, v0", vr(vt))
    a("ds_write_b128 %s, %s offset:%d", vr(vt), vr(z4, 4), KTB)
    a("v_cmp_gt_u32 vcc, 64, v0")
    se = S.alloc(2, 2)
    a("s_and_saveexec_b64 %s, vcc", sr(se, 2))
    a("ds_write_b128 %s, %s offset:%d", vr(vt), vr(z4, 4), KTB + 4096)
    a("v_lshrrev_b32 %s, 4, v0", vr(vt + 1)); a("v_mul_u32_u24 %s, %d, %s", vr(vt + 1), UCP, vr(vt + 1))
    a("v_and_b32 %s, 15, v0", vr(vt + 2)); a("v_lshl_add_u32 %s, %s, 4, %s", vr(vt + 1), vr(vt + 2), vr(vt + 1))
    a("ds_write_b128 %s, %s offset:%d", vr(vt + 1), vr(z4, 4), UCB)
    a("s_mov_b64 exec, %s", sr(se, 2))
    a("s_waitcnt lgkmcnt(0)")
    a("s_barrier")
    a("v_lshlrev_b32 %s, 1, v0", vr(vt))
    for i in range(8):
        for r in range(4):
            a("ds_write_b16 %s, %s offset:%d", vr(vt), vr(vu + i), UCB + r * UCP + (i * 256 + r + 64) * 2)
    fA = [[R.alloc(4, 4) for _ in range(2)] for _ in range(2)]
    R.release(fA[0][0])
    Xh = [[R.alloc(4, 4) for s_ in range(2)] for j in range(4)]
    Xl = [[R.alloc(4, 4) for s_ in range(2)] for j in range(4)]
    Yh = [[R.alloc(4, 4) for s_ in range(2)] for j in range(4)]
    Yl = [[R.alloc(4, 4) for s_ in range(2)] for j in range(4)]
    vl16 = R.alloc()
    a("v_and_b32 %s, 15, %s", vr(vl16), vr(vlane))
    a("v_cvt_f32_u32 %s, %s", vr(vl16), vr(vl16))
    lr2 = R.alloc(); om = R.alloc(); cr_ = R.alloc(); ci_ = R.alloc()
    wr = R.alloc(); wi = R.alloc(); zr = R.alloc(); zi = R.alloc(); dr = R.alloc(); di = R.alloc(); xr = R.alloc(); xi = R.alloc()
    tt = R.alloc(4); pv = R.alloc()
    for m in range(8):
        s_, i = divmod(m, 4)
        a("v_mul_f32 %s, %s, %s", vr(lr2), hexf(LOG2E), vr(vp + 0 * 8 + m))
        a("v_exp_f32 %s, %s", vr(lr2), vr(lr2)); a("s_nop 0")
        a("v_cvt_pk_bf16_f32 %s, %s, %s", vr(lr2), vr(lr2), vr(lr2)); a("v_lshlrev_b32 %s, 16, %s", vr(lr2), vr(lr2))
        a("v_mul_f32 %s, %s, %s", vr(lr2), vr(lr2), vr(vdt))
        a("v_mul_f32 %s, %s, %s", vr(lr2), hexf(-LOG2E), vr(lr2))
        a("v_mul_f32 %s, %s, %s", vr(om), vr(vp + 1 * 8 + m), vr(vdt))
        a("v_mul_f32 %s, %s, %s", vr(om), hexf(INV2PI), vr(om))
        a("v_mul_f32 %s, %s, %s", vr(cr_), vr(vp + 2 * 8 + m), vr(vdt)); a("v_add_f32 %s, %s, %s", vr(cr_), vr(cr_), vr(cr_))
        a("v_mul_f32 %s, %s, %s", vr(ci_), vr(vp + 3 * 8 + m), vr(vdt)); a("v_add_f32 %s, %s, %s", vr(ci_), vr(ci_), vr(ci_))
        cexp(a, wr, wi, lr2, om, vr(vl16), tt)
        for j in range(4):
            split_pair(a, Yh[j][s_] + i, Yl[j][s_] + i, wr, wi, tt)
            if j < 3:
                csq(a, zr, zi, wr, wi, tt); a("v_mov_b32 %s, %s", vr(wr), vr(zr)); a("v_mov_b32 %s, %s", vr(wi), vr(zi))
        a("v_mul_f32 %s, %s, %s", vr(pv), hexf(16.0), vr(vl16))
        cexp(a, wr, wi, lr2, om, vr(pv), tt)
        for j in range(4):
            if j == 0:
                a("v_mov_b32 %s, %s", vr(dr), vr(cr_)); a("v_mov_b32 %s, %s", vr(di), vr(ci_))
            else:
                cexp(a, zr, zi, lr2, om, hexf(float(2 ** (7 + j))), tt)
                cmul(a, dr, di, cr_, ci_, zr, zi)
                csq(a, zr, zi, wr, wi, tt); a("v_mov_b32 %s, %s", vr(wr), vr(zr)); a("v_mov_b32 %s, %s", vr(wi), vr(zi))
            cmul(a, xr, xi, dr, di, wr, wi)
            a("v_sub_f32 %s, 0, %s", vr(xi), vr(xi))
            split_pair(a, Xh[j][s_] + i, Xl[j][s_] + i, xr, xi, tt)
    kd = R.alloc(16, 4)
    for q in range(16): a("v_mov_b32 %s, 0", vr(kd + q))
    a("s_nop 1")
    for j in range(4):
        for s_ in range(2):
            for (A_, B_) in ((Xh, Yh), (Xh, Yl), (Xl, Yh)):
                a("v_mfma_f32_16x16x32_bf16 %s, %s, %s, %s", vr(kd + 4 * j, 4), vr(A_[j][s_], 4), vr(B_[j][s_], 4), vr(kd + 4 * j, 4))
    a("s_nop 7"); a("s_nop 1")
    basej = [0, 256, 384, 512]
    a("v_lshrrev_b32 %s, 4, %s", vr(vt), vr(vlane)); a("v_lshlrev_b32 %s, 6, %s", vr(vt), vr(vt))
    a("v_and_b32 %s, 15, %s", vr(vt + 1), vr(vlane)); a("v_add_u32 %s, %s, %s", vr(vt), vr(vt), vr(vt + 1))
    a("v_lshlrev_b32 %s, 2, %s", vr(vt), vr(vt))
    a("s_mul_i32 %s, %s, %d", sr(s_t0), sr(s_wave), PKS)
    a("v_add_u32 %s, %s, %s", vr(vt), sr(s_t0), vr(vt))
    vhq = R.alloc()
    a("v_lshrrev_b32 %s, 4, %s", vr(vhq), vr(vlane))
    for j in range(4):
        for r in range(4):
            if j == 0:
                a("ds_write_b32 %s, %s offset:%d", vr(vt), vr(kd + r), PKB + r * 64)
            else:
                a("v_cmp_gt_u32 vcc, %d, %s", 33 if (j == 3 and r == 0) else 32, vr(vlane))
                a("s_and_saveexec_b64 %s, vcc", sr(se, 2))
                a("ds_write_b32 %s, %s offset:%d", vr(vt), vr(kd + 4 * j + r), PKB + basej[j] * 4 + r * 64)
                a("s_mov_b64 exec, %s", sr(se, 2))
    a("s_waitcnt lgkmcnt(0)")
    a("s_barrier")
    a("v_lshlrev_b32 %s, 2, v0", vr(vt))
    p4 = R.alloc(4)
    for part in range(3):
        if part == 2:
            a("v_cmp_gt_u32 vcc, %d, v0", 641 - 512)
            a("s_and_saveexec_b64 %s, vcc", sr(se, 2))
        for w in range(4):
            a("ds_read_b32 %s, %s offset:%d", vr(p4 + w), vr(vt), PKB + w * PKS + part * 1024)
        a("s_waitcnt lgkmcnt(0)")
        a("v_add_f32 %s, %s, %s", vr(p4), vr(p4), vr(p4 + 1)); a("v_add_f32 %s, %s, %s", vr(p4 + 2), vr(p4 + 2), vr(p4 + 3))
        a("v_add_f32 %s, %s, %s", vr(p4), vr(p4), vr(p4 + 2))
        a("ds_write_b32 %s, %s offset:%d", vr(vt), vr(p4), KDB + part * 1024)
        if part == 2:
            a("s_mov_b64 exec, %s", sr(se, 2))
    a("s_waitcnt lgkmcnt(0)")
    a("s_barrier")
    vs = R.alloc(); vt0 = R.alloc(); kv = R.alloc(8); pk4 = R.alloc(4, 4)
    a("v_lshlrev_b32 %s, 3, v0", vr(vt0))
    a("v_or_b32 %s, 1, %s", vr(vt), vr(vt0))
    a("v_ffbh_u32 %s, %s", vr(vs), vr(vt))
    a("v_sub_u32 %s, 24, %s", vr(vs), vr(vs))
    a("v_max_i32 %s, 0, %s", vr(vs), vr(vs))
    for i in range(8):
        a("v_add_u32 %s, %d, %s", vr(vt), i, vr(vt0))
        a("v_lshrrev_b32 %s, %s, %s", vr(vt + 1), vr(vs), vr(vt))
        a("v_and_b32 %s, 1, %s", vr(vt + 1), vr(vt + 1))
        a("v_lshlrev_b32 %s, %s, 1", vr(vt + 2), vr(vs))
        a("v_lshrrev_b32 %s, 1, %s", vr(vt + 2), vr(vt + 2))
        a("v_add3_u32 %s, %s, %s, %s", vr(vt + 1), vr(vt + 1), vr(vt + 2), vr(vt))
        a("v_subrev_u32 %s, 1, %s", vr(vt + 1), vr(vt + 1))
        a("v_cmp_eq_u32 vcc, 0, %s", vr(vs))
        a("s_nop 1")
        a("v_cndmask_b32 %s, %s, %s, vcc", vr(vt + 1), vr(vt + 1), vr(vt))
        a("v_lshrrev_b32 %s, %s, %s", vr(vt + 1), vr(vs), vr(vt + 1))
        a("v_lshl_add_u32 %s, %s, 7, %s", vr(vt + 1), vr(vs), vr(vt + 1))
        a("v_lshlrev_b32 %s, 2, %s", vr(vt + 1), vr(vt + 1))
        a("ds_read_b32 %s, %s offset:%d", vr(kv + i), vr(vt + 1), KDB)
    a("s_waitcnt lgkmcnt(0)")
    for i in range(4):
        a("v_cvt_pk_bf16_f32 %s, %s, %s", vr(pk4 + i), vr(kv + 2 * i), vr(kv + 2 * i + 1))
    a("v_lshrrev_b32 %s, 3, v0", vr(vt)); a("v_mul_u32_u24 %s, %d, %s", vr(vt), KPITCH, vr(vt))
    a("v_and_b32 %s, 7, v0", vr(vt + 1)); a("v_lshl_add_u32 %s, %s, 4, %s", vr(vt), vr(vt + 1), vr(vt))
    a("ds_write_b128 %s, %s offset:%d", vr(vt), vr(pk4, 4), KTB + 32 * KPITCH)
    a("s_waitcnt lgkmcnt(0)")
    a("s_barrier")
    R.release(Xh[0][0])
    vka = R.alloc(); vub = R.alloc()
    a("v_and_b32 %s, 31, %s", vr(vt), vr(vlane)); a("v_add_u32 %s, 25, %s", vr(vt), vr(vt))
    a("v_mul_u32_u24 %s, %d, %s", vr(vka), KPITCH, vr(vt))
    a("v_lshrrev_b32 %s, 5, %s", vr(vt), vr(vlane)); a("v_lshl_add_u32 %s, %s, 4, %s", vr(vka), vr(vt), vr(vka))
    a("s_mul_i32 %s, %s, %d", sr(s_t0), sr(s_wave), 8 * KPITCH)
    a("v_sub_u32 %s, %s, %s", vr(vka), vr(vka), sr(s_t0))
    a("v_lshrrev_b32 %s, 2, %s", vr(vt), vr(vlane)); a("v_and_b32 %s, 3, %s", vr(vt), vr(vt))
    a("v_mul_u32_u24 %s, %d, %s", vr(vub), UCP, vr(vt))
    a("v_lshrrev_b32 %s, 4, %s", vr(vt), vr(vlane)); a("v_and_b32 %s, 1, %s", vr(vt), vr(vt)); a("v_lshl_add_u32 %s, %s, 5, %s", vr(vub), vr(vt), vr(vub))
    a("v_lshrrev_b32 %s, 5, %s", vr(vt), vr(vlane)); a("v_lshlrev_b32 %s, 4, %s", vr(vt), vr(vt)); a("v_sub_u32 %s, %s, %s", vr(vub), vr(vub), vr(vt))
    a("v_and_b32 %s, 3, %s", vr(vt), vr(vlane)); a("v_lshl_add_u32 %s, %s, 3, %s", vr(vub), vr(vt), vr(vub))
    a("s_lshl_b32 %s, %s, 10", sr(s_t0), sr(s_wave))
    a("v_add_u32 %s, %s, %s", vr(vub), sr(s_t0), vr(vub))
    acc = [R.alloc(16, 4) for _ in range(2)]
    for nu in range(2):
        for q in range(16): a("v_mov_b32 %s, 0", vr(acc[nu] + q))
    fK = [R.alloc(4, 4) for _ in range(4)]
    fU = {}
    ufr = [R.alloc(4, 4) for _ in range(6)]
    for jj in range(8):
        for kap in range(4):
            a("ds_read_b128 %s, %s offset:%d", vr(fK[kap], 4), vr(vka), KTB + (7 - jj) * KPITCH + 32 * kap)
        cs = sorted(set(32 * nu - 16 * kap for nu in range(2) for kap in range(4)))
        for ci, c in enumerate(cs):
            off = UCB + (64 * jj + c + 64) * 2
            a("ds_read_b64_tr_b16 %s, %s offset:%d", vr(ufr[ci], 2), vr(vub), off)
            a("ds_read_b64_tr_b16 %s, %s offset:%d", vr(ufr[ci] + 2, 2), vr(vub), off - 8)
        a("s_waitcnt lgkmcnt(0)")
        for kap in range(4):
            for nu in range(2):
                ci = cs.index(32 * nu - 16 * kap)
                a("v_mfma_f32_32x32x16_bf16 %s, %s, %s, %s", vr(acc[nu], 16), vr(fK[kap], 4), vr(ufr[ci], 4), vr(acc[nu], 16))
    a("s_nop 15"); a("s_nop 3")
    a("s_barrier")
    a("v_lshrrev_b32 %s, 5, %s", vr(vt), vr(vlane)); a("v_lshlrev_b32 %s, 10, %s", vr(vt), vr(vt))
    a("v_and_b32 %s, 31, %s", vr(vt + 1), vr(vlane)); a("v_lshl_add_u32 %s, %s, 2, %s", vr(vt), vr(vt + 1), vr(vt))
    a("s_lshl_b32 %s, %s, 13", sr(s_t0), sr(s_wave))
    a("v_add_u32 %s, %s, %s", vr(vt), sr(s_t0), vr(vt))
    for nu in range(2):
        for q in range(16):
            I = 8 * (q // 4) + (q % 4)
            a("ds_write_b32 %s, %s offset:%d", vr(vt), vr(acc[nu] + q), REDB + I * 256 + nu * 128)
    a("s_waitcnt lgkmcnt(0)")
    a("s_barrier")
    a("v_lshlrev_b32 %s, 5, v0", vr(vt))
    y = R.alloc(8, 4); yb = R.alloc(8, 4)
    a("ds_read_b128 %s, %s offset:%d", vr(y, 4), vr(vt), REDB); a("ds_read_b128 %s, %s offset:%d", vr(y + 4, 4), vr(vt), REDB + 16)
    for w in range(1, 4):
        a("ds_read_b128 %s, %s offset:%d", vr(yb, 4), vr(vt), REDB + w * 8192); a("ds_read_b128 %s, %s offset:%d", vr(yb + 4, 4), vr(vt), REDB + w * 8192 + 16)
        a("s_waitcnt lgkmcnt(0)")
        for e in range(8): a("v_add_f32 %s, %s, %s", vr(y + e), vr(y + e), vr(yb + e))
    a("v_lshlrev_b32 %s, 4, v0", vr(vt))
    uu = R.alloc(4, 4)
    a("ds_read_b128 %s, %s offset:%d", vr(uu, 4), vr(vt), UCB + 64 * 2)
    a("s_waitcnt lgkmcnt(0)")
    o4 = R.alloc(4, 4)
    for k in range(4):
        a("v_cvt_pk_bf16_f32 %s, %s, %s", vr(vt), vr(y + 2 * k), vr(y + 2 * k + 1))
        a("v_lshlrev_b32 %s, 16, %s", vr(y + 2 * k), vr(vt)); a("v_and_b32 %s, 0xffff0000, %s", vr(y + 2 * k + 1), vr(vt))
        a("v_lshlrev_b32 %s, 16, %s", vr(vt + 1), vr(uu + k)); a("v_and_b32 %s, 0xffff0000, %s", vr(vt + 2), vr(uu + k))
        a("v_mul_f32 %s, %s, %s", vr(vt + 1), vr(vdsk), vr(vt + 1)); a("v_mul_f32 %s, %s, %s", vr(vt + 2), vr(vdsk), vr(vt + 2))
        a("v_cvt_pk_bf16_f32 %s, %s, %s", vr(vt), vr(vt + 1), vr(vt + 2))
        a("v_lshlrev_b32 %s, 16, %s", vr(vt + 1), vr(vt)); a("v_and_b32 %s, 0xffff0000, %s", vr(vt + 2), vr(vt))
        a("v_add_f32 %s, %s, %s", vr(vt + 1), vr(vt + 1), vr(y + 2 * k)); a("v_add_f32 %s, %s, %s", vr(vt + 2), vr(vt + 2), vr(y + 2 * k + 1))
        a("v_cvt_pk_bf16_f32 %s, %s, %s", vr(o4 + k), vr(vt + 1), vr(vt + 2))
    a("v_lshlrev_b32 %s, 4, v0", vr(vt))
    a("s_lshl_b32 %s, %s, 12", sr(s_t0), sr(s_d)); a("s_add_u32 %s, %s, 0x%x", sr(s_t0), sr(s_t0), WS_AT)
    a("buffer_store_dwordx4 %s, %s, %s, %s offen", vr(o4, 4), vr(vt), sr(sW, 4), sr(s_t0))
    return R.hi
```

```python
from asmlib import *

WS_H   = 0
WS_AT  = 8 << 20
WS_G   = 12 << 20

KARG = dict(u=0, lar=8, aim=16, cr=24, ci=32, ldt=40, dsk=48, bx=56, w1=64, w2=72, gw=80, out=88, dbg=96, ws=104)

def srd(a, s, base_lo, base_hi, size):
    a("s_mov_b32 %s, %s", sr(s), base_lo)
    a("s_mov_b32 %s, %s", sr(s+1), base_hi)
    a("s_mov_b32 %s, 0x%x", sr(s+2), size)
    a("s_mov_b32 %s, 0x00020000", sr(s+3))

def fA(row, BK):
    return ((row >> 1) & 7) if BK == 64 else ((row >> 2) & 3)
def fB(k, BN):
    if BN == 128: return (k & 3) << 2
    if BN == 64: return ((k >> 1) & 1) << 2
    raise ValueError
class GemmCfg:
    def __init__(s, M, N, K, BM, BN, BK, lda, ldb, nbuf=3):
        s.M, s.N, s.K, s.BM, s.BN, s.BK, s.lda, s.ldb, s.nbuf = M, N, K, BM, BN, BK, lda, ldb, nbuf
        s.MT = BM // 64; s.NT = BN // 64
        s.KS = BK // 16
        s.nst = K // BK
        assert K % BK == 0
        s.abytes = BM * BK * 2; s.bbytes = BK * BN * 2
        s.nAw = s.abytes // 1024 // 4; s.nBw = s.bbytes // 1024 // 4
        s.tilesM = M // BM; s.tilesN = (N + BN - 1) // BN
        s.lds = nbuf * (s.abytes + s.bbytes)

import os
DBG_NOMFMA = os.environ.get("NOMFMA"); DBG_NODMA = os.environ.get("NODMA"); DBG_NOLDS = os.environ.get("NOLDS")
def emit_gemm_mainloop(a, c, R, S, srdA, srdB, s_row0, s_col0, s_wave, lds_base=0):
    MT, NT, KS, BK, BM, BN = c.MT, c.NT, c.KS, c.BK, c.BM, c.BN
    RA = BK * 2; RB = BN * 2
    chA = RA // 16; chB = RB // 16
    vlane = R.alloc(); vt0 = R.alloc(); vt1 = R.alloc(); vt2 = R.alloc()
    a("v_and_b32 %s, 63, v0", vr(vlane))
    a("v_lshrrev_b32 %s, 6, v0", vr(vt0)); a("s_nop 0")
    a("v_readfirstlane_b32 %s, %s", sr(s_wave), vr(vt0))
    a("s_nop 4")
    s_wm = S.alloc(); s_wn = S.alloc(); s_t0 = S.alloc(); s_t1 = S.alloc()
    a("s_lshr_b32 %s, %s, 1", sr(s_wm), sr(s_wave))
    a("s_and_b32 %s, %s, 1", sr(s_wn), sr(s_wave))
    vdA = [R.alloc() for _ in range(c.nAw)]
    vdB = [R.alloc() for _ in range(c.nBw)]
    lg = lambda x: x.bit_length() - 1
    for i in range(c.nAw):
        a("s_mul_i32 %s, %s, %d", sr(s_t0), sr(s_wave), c.nAw * 64)
        a("s_add_u32 %s, %s, %d", sr(s_t0), sr(s_t0), i * 64)
        a("v_add_u32 %s, %s, %s", vr(vt0), sr(s_t0), vr(vlane))
        a("v_lshrrev_b32 %s, %d, %s", vr(vt1), lg(chA), vr(vt0))
        a("v_and_b32 %s, %d, %s", vr(vt0), chA - 1, vr(vt0))
        if BK == 64:
            a("v_lshrrev_b32 %s, 1, %s", vr(vt2), vr(vt1)); a("v_and_b32 %s, 7, %s", vr(vt2), vr(vt2))
        else:
            a("v_lshrrev_b32 %s, 2, %s", vr(vt2), vr(vt1)); a("v_and_b32 %s, 3, %s", vr(vt2), vr(vt2))
        a("v_xor_b32 %s, %s, %s", vr(vt0), vr(vt0), vr(vt2))
        a("v_add_u32 %s, %s, %s", vr(vt1), sr(s_row0), vr(vt1))
        a("s_mov_b32 %s, %d", sr(s_t1), c.lda * 2)
        a("v_mul_lo_u32 %s, %s, %s", vr(vt1), vr(vt1), sr(s_t1))
        a("v_lshl_add_u32 %s, %s, 4, %s", vr(vdA[i]), vr(vt0), vr(vt1))
    for i in range(c.nBw):
        a("s_mul_i32 %s, %s, %d", sr(s_t0), sr(s_wave), c.nBw * 64)
        a("s_add_u32 %s, %s, %d", sr(s_t0), sr(s_t0), i * 64)
        a("v_add_u32 %s, %s, %s", vr(vt0), sr(s_t0), vr(vlane))
        a("v_lshrrev_b32 %s, %d, %s", vr(vt1), lg(chB), vr(vt0))
        a("v_and_b32 %s, %d, %s", vr(vt0), chB - 1, vr(vt0))
        if BN == 128:
            a("v_and_b32 %s, 3, %s", vr(vt2), vr(vt1)); a("v_lshlrev_b32 %s, 2, %s", vr(vt2), vr(vt2))
        else:
            a("v_lshrrev_b32 %s, 1, %s", vr(vt2), vr(vt1)); a("v_and_b32 %s, 1, %s", vr(vt2), vr(vt2)); a("v_lshlrev_b32 %s, 2, %s", vr(vt2), vr(vt2))
        a("v_xor_b32 %s, %s, %s", vr(vt0), vr(vt0), vr(vt2))
        a("s_mov_b32 %s, %d", sr(s_t1), c.ldb * 2)
        a("v_mul_lo_u32 %s, %s, %s", vr(vt1), vr(vt1), sr(s_t1))
        a("v_lshl_add_u32 %s, %s, 4, %s", vr(vt0), vr(vt0), vr(vt1))
        a("s_lshl_b32 %s, %s, 1", sr(s_t1), sr(s_col0))
        a("v_add_u32 %s, %s, %s", vr(vdB[i]), sr(s_t1), vr(vt0))
    Aoff = lambda b: lds_base + b * c.abytes
    Boff = lambda b: lds_base + c.nbuf * c.abytes + b * c.bbytes
    s_mA = S.alloc(); s_mB = S.alloc()
    a("s_mul_i32 %s, %s, %d", sr(s_mA), sr(s_wave), c.nAw * 1024)
    a("s_mul_i32 %s, %s, %d", sr(s_mB), sr(s_wave), c.nBw * 1024)
    s_soA = S.alloc(); s_soB = S.alloc()
    def issue_stage(st):
        if DBG_NODMA: return
        b = st % c.nbuf
        a("s_mov_b32 %s, %d", sr(s_soA), st * BK * 2)
        a("s_mov_b32 %s, %d", sr(s_soB), st * BK * c.ldb * 2)
        for i in range(c.nAw):
            a("s_add_u32 m0, %s, %d", sr(s_mA), Aoff(b) + i * 1024)
            a("s_nop 0")
            a("buffer_load_dwordx4 %s, %s, %s offen lds", vr(vdA[i]), sr(srdA, 4), sr(s_soA))
        for i in range(c.nBw):
            a("s_add_u32 m0, %s, %d", sr(s_mB), Boff(b) + i * 1024)
            a("s_nop 0")
            a("buffer_load_dwordx4 %s, %s, %s offen lds", vr(vdB[i]), sr(srdB, 4), sr(s_soB))
    vaA = [[R.alloc() for _ in range(KS)] for _ in range(MT)]
    a("v_and_b32 %s, 31, %s", vr(vt0), vr(vlane))
    a("v_lshrrev_b32 %s, 5, %s", vr(vt1), vr(vlane))
    for mt in range(MT):
        a("s_mul_i32 %s, %s, %d", sr(s_t0), sr(s_wm), BM // 2)
        a("s_add_u32 %s, %s, %d", sr(s_t0), sr(s_t0), mt * 32)
        a("v_add_u32 %s, %s, %s", vr(vt2), sr(s_t0), vr(vt0))
        vf = R.alloc()
        if BK == 64:
            a("v_lshrrev_b32 %s, 1, %s", vr(vf), vr(vt2)); a("v_and_b32 %s, 7, %s", vr(vf), vr(vf))
        else:
            a("v_lshrrev_b32 %s, 2, %s", vr(vf), vr(vt2)); a("v_and_b32 %s, 3, %s", vr(vf), vr(vf))
        for kap in range(KS):
            t = vaA[mt][kap]
            a("v_add_u32 %s, %d, %s", vr(t), 2 * kap, vr(vt1))
            a("v_xor_b32 %s, %s, %s", vr(t), vr(t), vr(vf))
            a("v_lshlrev_b32 %s, 4, %s", vr(t), vr(t))
            a("v_lshl_add_u32 %s, %s, %d, %s", vr(t), vr(vt2), lg(RA), vr(t))
        R.release(vf)
    vaB = [R.alloc() for _ in range(NT)]
    vr_ = R.alloc(); vk = R.alloc()
    a("v_lshrrev_b32 %s, 2, %s", vr(vr_), vr(vlane)); a("v_and_b32 %s, 3, %s", vr(vr_), vr(vr_))
    a("v_lshrrev_b32 %s, 5, %s", vr(vk), vr(vlane)); a("v_lshl_add_u32 %s, %s, 3, %s", vr(vk), vr(vk), vr(vr_))
    for nt in range(NT):
        t = vaB[nt]
        a("v_lshrrev_b32 %s, 4, %s", vr(vt0), vr(vlane)); a("v_and_b32 %s, 1, %s", vr(vt0), vr(vt0)); a("v_lshlrev_b32 %s, 5, %s", vr(vt0), vr(vt0))
        a("v_and_b32 %s, 3, %s", vr(vt1), vr(vlane)); a("v_lshl_add_u32 %s, %s, 3, %s", vr(vt0), vr(vt1), vr(vt0))
        a("s_mul_i32 %s, %s, %d", sr(s_t0), sr(s_wn), BN)
        a("s_add_u32 %s, %s, %d", sr(s_t0), sr(s_t0), 64 * nt)
        a("v_add_u32 %s, %s, %s", vr(vt0), sr(s_t0), vr(vt0))
        if BN == 128:
            a("v_lshlrev_b32 %s, 6, %s", vr(vt1), vr(vr_))
        else:
            a("v_lshrrev_b32 %s, 1, %s", vr(vt1), vr(vr_)); a("v_lshlrev_b32 %s, 6, %s", vr(vt1), vr(vt1))
        a("v_xor_b32 %s, %s, %s", vr(vt0), vr(vt0), vr(vt1))
        a("v_lshl_add_u32 %s, %s, %d, %s", vr(t), vr(vk), lg(RB), vr(vt0))
        a("v_add_u32 %s, %d, %s", vr(t), Boff(0), vr(t))
    acc = [[R.alloc(16, 4) for _ in range(MT)] for _ in range(NT)]
    for nt in range(NT):
        for mt in range(MT):
            for r in range(16):
                a("v_mov_b32 %s, 0", vr(acc[nt][mt] + r))
    fX = [[R.alloc(4, 4) for _ in range(MT)] for _ in range(2)]
    fW = [[R.alloc(4, 4) for _ in range(NT)] for _ in range(2)]
    def load_frags(st, kap, sset):
        b = st % c.nbuf
        n = 0
        if DBG_NOLDS: return 0
        for mt in range(MT):
            a("ds_read_b128 %s, %s offset:%d", vr(fX[sset][mt], 4), vr(vaA[mt][kap]), Aoff(b)); n += 1
        for nt in range(NT):
            off = b * c.bbytes + kap * 16 * RB
            a("ds_read_b64_tr_b16 %s, %s offset:%d", vr(fW[sset][nt], 2), vr(vaB[nt]), off)
            a("ds_read_b64_tr_b16 %s, %s offset:%d", vr(fW[sset][nt] + 2, 2), vr(vaB[nt]), off + 4 * RB); n += 2
        return n
    per = c.nAw + c.nBw
    issue_stage(0)
    if c.nst > 1: issue_stage(1)
    for st in range(c.nst):
        a("s_waitcnt vmcnt(%d)", per if st + 1 < c.nst else 0)
        a("s_barrier")
        if st + 2 < c.nst: issue_stage(st + 2)
        n = load_frags(st, 0, 0)
        for kap in range(KS):
            if kap + 1 < KS:
                n2 = load_frags(st, kap + 1, (kap + 1) % 2)
                a("s_waitcnt lgkmcnt(%d)", n2)
            else:
                a("s_waitcnt lgkmcnt(0)")
            sset = kap % 2
            for nt in range(NT):
                for mt in range(MT):
                    if DBG_NOMFMA: continue
                    a("v_mfma_f32_32x32x16_bf16 %s, %s, %s, %s", vr(acc[nt][mt], 16), vr(fW[sset][nt], 4), vr(fX[sset][mt], 4), vr(acc[nt][mt], 16))
    a("s_nop 15"); a("s_nop 3")
    return dict(acc=acc, vlane=vlane, s_wm=s_wm, s_wn=s_wn, tmp=[vt0, vt1, vt2])

def bf16_round_pair(a, vd, v0_, v1_):
    a("v_cvt_pk_bf16_f32 %s, %s, %s", vr(vd), vr(v0_), vr(v1_))

def emit_silu(a, v, t0, t1):
    for x in v:
        a("v_mul_f32 %s, %s, %s", vr(t0), hexf(-1.4426950408889634), vr(x))
        a("v_exp_f32 %s, %s", vr(t0), vr(t0))
        a("s_nop 0")
        a("v_add_f32 %s, 1.0, %s", vr(t0), vr(t0))
        a("v_rcp_f32 %s, %s", vr(t0), vr(t0))
        a("s_nop 0")
        a("v_mul_f32 %s, %s, %s", vr(x), vr(x), vr(t0))

def gen_gemm1_body(a, wg_sreg=2):
    c = GemmCfg(2048, 1728, 640, 128, 128, 64, 640, 1728)
    R = Regs(1, 256); S = Regs(16, 100)
    srdA, srdB, srdO = 4, 8, 12
    sp = S.alloc(2, 2)
    a("s_load_dwordx2 %s, s[0:1], %d", sr(sp, 2), KARG['u'])
    sp2 = S.alloc(2, 2)
    a("s_load_dwordx2 %s, s[0:1], %d", sr(sp2, 2), KARG['w1'])
    sp3 = S.alloc(2, 2)
    a("s_load_dwordx2 %s, s[0:1], %d", sr(sp3, 2), KARG['ws'])
    a("s_waitcnt lgkmcnt(0)")
    srd(a, srdA, sr(sp), sr(sp + 1), 2048 * 640 * 2)
    srd(a, srdB, sr(sp2), sr(sp2 + 1), 640 * 1728 * 2)
    srd(a, srdO, sr(sp3), sr(sp3 + 1), 2048 * 1728 * 2)
    s_tm = S.alloc(); s_tn = S.alloc(); s_row0 = S.alloc(); s_col0 = S.alloc(); s_wave = S.alloc()
    tilesN = c.tilesN
    a("s_mul_hi_u32 %s, %s, 0x%x", sr(s_tm), sr(wg_sreg), (2**32 + tilesN - 1) // tilesN)
    a("s_mul_i32 %s, %s, %d", sr(s_tn), sr(s_tm), tilesN)
    a("s_sub_u32 %s, %s, %s", sr(s_tn), sr(wg_sreg), sr(s_tn))
    a("s_lshl_b32 %s, %s, 7", sr(s_row0), sr(s_tm))
    a("s_lshl_b32 %s, %s, 7", sr(s_col0), sr(s_tn))
    r = emit_gemm_mainloop(a, c, R, S, srdA, srdB, s_row0, s_col0, s_wave)
    acc, vlane = r['acc'], r['vlane']
    s_t = S.alloc()
    a("s_lshl_b32 %s, %s, 6", sr(s_t), sr(r['s_wn']))
    a("s_add_u32 %s, %s, %s", sr(s_t), sr(s_t), sr(s_col0))
    Lskip = a.newlabel("g1skip")
    a("s_cmp_ge_u32 %s, %d", sr(s_t), c.N)
    a("s_cbranch_scc1 %s", Lskip)
    t0, t1, t2 = r['tmp']
    voff = R.alloc()
    a("v_and_b32 %s, 31, %s", vr(t0), vr(vlane))
    a("s_lshl_b32 %s, %s, 6", sr(s_tm), sr(r['s_wm']))
    a("s_add_u32 %s, %s, %s", sr(s_tm), sr(s_tm), sr(s_row0))
    a("v_add_u32 %s, %s, %s", vr(t0), sr(s_tm), vr(t0))
    a("s_mov_b32 %s, %d", sr(s_tn), 1728 * 2)
    a("v_mul_lo_u32 %s, %s, %s", vr(voff), vr(t0), sr(s_tn))
    a("v_lshrrev_b32 %s, 5, %s", vr(t1), vr(vlane))
    a("v_lshlrev_b32 %s, 3, %s", vr(t1), vr(t1))
    a("s_lshl_b32 %s, %s, 1", sr(s_t), sr(s_t))
    a("v_add3_u32 %s, %s, %s, %s", vr(voff), vr(voff), vr(t1), sr(s_t))
    pk = R.alloc(2, 2)
    voffs = [voff] + [R.alloc() for _ in range(c.MT - 1)]
    for mt in range(1, c.MT):
        a("v_add_u32 %s, 0x%x, %s", vr(voffs[mt]), mt * 32 * 1728 * 2, vr(voff))
    for nt in range(c.NT):
        for mt in range(c.MT):
            for Q in range(4):
                regs = [acc[nt][mt] + 4 * Q + e for e in range(4)]
                bf16_round_pair(a, pk, regs[0], regs[1]); bf16_round_pair(a, pk + 1, regs[2], regs[3])
                a("v_lshlrev_b32 %s, 16, %s", vr(regs[0]), vr(pk)); a("v_and_b32 %s, 0xffff0000, %s", vr(regs[1]), vr(pk))
                a("v_lshlrev_b32 %s, 16, %s", vr(regs[2]), vr(pk + 1)); a("v_and_b32 %s, 0xffff0000, %s", vr(regs[3]), vr(pk + 1))
                if not os.environ.get("NOSILU"): emit_silu(a, regs, t0, t1)
                bf16_round_pair(a, pk, regs[0], regs[1]); bf16_round_pair(a, pk + 1, regs[2], regs[3])
                if not os.environ.get("NOSTORE"): a("buffer_store_dwordx2 %s, %s, %s, 0 offen offset:%d", vr(pk, 2), vr(voffs[mt]), sr(srdO, 4), (nt * 32 + 8 * Q) * 2)
    a.label(Lskip)
    return c, R.hi

def gen_gemm2_body(a, wg_sreg=2):
    c = GemmCfg(2048, 640, 1728, 128, 64, 64, 1728, 640)
    R = Regs(1, 256); S = Regs(16, 100)
    srdA, srdB, srdO, srdW = 4, 8, 12, S.alloc(4, 4)
    sp = S.alloc(2, 2)
    a("s_load_dwordx2 %s, s[0:1], %d", sr(sp, 2), KARG['ws'])
    sp2 = S.alloc(2, 2)
    a("s_load_dwordx2 %s, s[0:1], %d", sr(sp2, 2), KARG['w2'])
    sp3 = S.alloc(2, 2)
    a("s_load_dwordx2 %s, s[0:1], %d", sr(sp3, 2), KARG['out'])
    a("s_waitcnt lgkmcnt(0)")
    srd(a, srdA, sr(sp), sr(sp + 1), 2048 * 1728 * 2)
    srd(a, srdB, sr(sp2), sr(sp2 + 1), 1728 * 640 * 2)
    srd(a, srdO, sr(sp3), sr(sp3 + 1), 2048 * 640 * 2)
    srd(a, srdW, sr(sp), sr(sp + 1), WS_G + 2048 * 4)
    s_tm = S.alloc(); s_tn = S.alloc(); s_row0 = S.alloc(); s_col0 = S.alloc(); s_wave = S.alloc()
    tilesN = c.tilesN
    a("s_mul_hi_u32 %s, %s, 0x%x", sr(s_tm), sr(wg_sreg), (2**32 + tilesN - 1) // tilesN)
    a("s_mul_i32 %s, %s, %d", sr(s_tn), sr(s_tm), tilesN)
    a("s_sub_u32 %s, %s, %s", sr(s_tn), sr(wg_sreg), sr(s_tn))
    a("s_lshl_b32 %s, %s, 7", sr(s_row0), sr(s_tm))
    a("s_lshl_b32 %s, %s, 6", sr(s_col0), sr(s_tn))
    r = emit_gemm_mainloop(a, c, R, S, srdA, srdB, s_row0, s_col0, s_wave)
    acc, vlane = r['acc'], r['vlane']
    t0, t1, t2 = r['tmp']
    PITCH = 272
    a("s_barrier")
    vtid = R.alloc(); va = R.alloc(); vl = R.alloc(); tmp4 = R.alloc(4, 4)
    for j in range(4):
        a("v_add_u32 %s, %d, v0", vr(vtid), j * 256)
        a("v_lshrrev_b32 %s, 4, %s", vr(va), vr(vtid))
        a("v_and_b32 %s, 15, %s", vr(vl), vr(vtid))
        a("v_add_u32 %s, %s, %s", vr(t0), sr(s_col0), vr(va))
        a("v_lshlrev_b32 %s, 12, %s", vr(t0), vr(t0))
        a("v_lshl_add_u32 %s, %s, 4, %s", vr(t0), vr(vl), vr(t0))
        a("s_lshl_b32 %s, %s, 1", sr(s_tm), sr(s_row0))
        a("s_add_u32 %s, %s, 0x%x", sr(s_tm), sr(s_tm), WS_AT)
        a("buffer_load_dwordx4 %s, %s, %s, %s offen", vr(tmp4, 4), vr(t0), sr(srdW, 4), sr(s_tm))
        a("s_mov_b32 %s, %d", sr(s_tn), PITCH)
        a("v_mul_lo_u32 %s, %s, %s", vr(t1), vr(va), sr(s_tn))
        a("v_lshl_add_u32 %s, %s, 4, %s", vr(t1), vr(vl), vr(t1))
        a("s_waitcnt vmcnt(0)")
        a("ds_write_b128 %s, %s", vr(t1), vr(tmp4, 4))
    a("s_waitcnt lgkmcnt(0)")
    a("s_barrier")
    vat = R.alloc()
    a("v_lshrrev_b32 %s, 5, %s", vr(t0), vr(vlane)); a("v_lshlrev_b32 %s, 2, %s", vr(t0), vr(t0))
    a("v_lshrrev_b32 %s, 2, %s", vr(t1), vr(vlane)); a("v_and_b32 %s, 3, %s", vr(t1), vr(t1))
    a("v_add_u32 %s, %s, %s", vr(t0), vr(t0), vr(t1))
    a("s_lshl_b32 %s, %s, 5", sr(s_tm), sr(r['s_wn']))
    a("v_add_u32 %s, %s, %s", vr(t0), sr(s_tm), vr(t0))
    a("s_mov_b32 %s, %d", sr(s_tn), PITCH)
    a("v_mul_lo_u32 %s, %s, %s", vr(vat), vr(t0), sr(s_tn))
    a("v_lshrrev_b32 %s, 4, %s", vr(t0), vr(vlane)); a("v_and_b32 %s, 1, %s", vr(t0), vr(t0)); a("v_lshlrev_b32 %s, 5, %s", vr(t0), vr(t0))
    a("v_and_b32 %s, 3, %s", vr(t1), vr(vlane)); a("v_lshl_add_u32 %s, %s, 3, %s", vr(t0), vr(t1), vr(t0))
    a("s_lshl_b32 %s, %s, 7", sr(s_tm), sr(r['s_wm']))
    a("v_add3_u32 %s, %s, %s, %s", vr(vat), vr(vat), vr(t0), sr(s_tm))
    voff = R.alloc(); vg = [R.alloc() for _ in range(c.MT)]
    a("v_and_b32 %s, 31, %s", vr(t0), vr(vlane))
    a("s_lshl_b32 %s, %s, 6", sr(s_tm), sr(r['s_wm']))
    a("s_add_u32 %s, %s, %s", sr(s_tm), sr(s_tm), sr(s_row0))
    a("v_add_u32 %s, %s, %s", vr(t0), sr(s_tm), vr(t0))
    a("s_mov_b32 %s, 0x%x", sr(s_tm), WS_G)
    for mt in range(c.MT):
        a("v_lshlrev_b32 %s, 2, %s", vr(t1), vr(t0))
        a("buffer_load_dword %s, %s, %s, %s offen offset:%d", vr(vg[mt]), vr(t1), sr(srdW, 4), sr(s_tm), mt * 128)
    a("v_mul_u32_u24 %s, %d, %s", vr(voff), 640 * 2, vr(t0))
    a("v_lshrrev_b32 %s, 5, %s", vr(t1), vr(vlane)); a("v_lshlrev_b32 %s, 3, %s", vr(t1), vr(t1))
    a("s_lshl_b32 %s, %s, 6", sr(s_tn), sr(r['s_wn']))
    a("s_lshl_b32 %s, %s, 1", sr(s_tm), sr(s_col0))
    a("s_add_u32 %s, %s, %s", sr(s_tm), sr(s_tm), sr(s_tn))
    a("v_add3_u32 %s, %s, %s, %s", vr(voff), vr(voff), vr(t1), sr(s_tm))
    av = R.alloc(8, 4); pk = R.alloc(2, 2); w = R.alloc(4); g1 = R.alloc()
    a("s_waitcnt vmcnt(0)")
    for mt in range(c.MT):
        for Q in range(4):
            a("ds_read_b64_tr_b16 %s, %s offset:%d", vr(av + 2 * (Q % 4), 2), vr(vat), Q * 8 * PITCH + mt * 64)
        a("v_sub_f32 %s, 1.0, %s", vr(g1), vr(vg[mt]))
        a("v_cvt_pk_bf16_f32 %s, %s, %s", vr(g1), vr(g1), vr(g1))
        a("v_lshlrev_b32 %s, 16, %s", vr(g1), vr(g1))
        a("s_waitcnt lgkmcnt(0)")
        for Q in range(4):
            regs = [acc[0][mt] + 4 * Q + e for e in range(4)]
            bf16_round_pair(a, pk, regs[0], regs[1]); bf16_round_pair(a, pk + 1, regs[2], regs[3])
            a("v_lshlrev_b32 %s, 16, %s", vr(regs[0]), vr(pk)); a("v_and_b32 %s, 0xffff0000, %s", vr(regs[1]), vr(pk))
            a("v_lshlrev_b32 %s, 16, %s", vr(regs[2]), vr(pk + 1)); a("v_and_b32 %s, 0xffff0000, %s", vr(regs[3]), vr(pk + 1))
            a("v_lshlrev_b32 %s, 16, %s", vr(w), vr(av + 2 * Q)); a("v_and_b32 %s, 0xffff0000, %s", vr(w + 1), vr(av + 2 * Q))
            a("v_lshlrev_b32 %s, 16, %s", vr(w + 2), vr(av + 2 * Q + 1)); a("v_and_b32 %s, 0xffff0000, %s", vr(w + 3), vr(av + 2 * Q + 1))
            for e in range(4):
                a("v_mul_f32 %s, %s, %s", vr(w + e), vr(vg[mt]), vr(w + e))
                a("v_mul_f32 %s, %s, %s", vr(regs[e]), vr(g1), vr(regs[e]))
            bf16_round_pair(a, pk, w, w + 1); bf16_round_pair(a, pk + 1, w + 2, w + 3)
            a("v_lshlrev_b32 %s, 16, %s", vr(w), vr(pk)); a("v_and_b32 %s, 0xffff0000, %s", vr(w + 1), vr(pk))
            a("v_lshlrev_b32 %s, 16, %s", vr(w + 2), vr(pk + 1)); a("v_and_b32 %s, 0xffff0000, %s", vr(w + 3), vr(pk + 1))
            bf16_round_pair(a, pk, regs[0], regs[1]); bf16_round_pair(a, pk + 1, regs[2], regs[3])
            a("v_lshlrev_b32 %s, 16, %s", vr(regs[0]), vr(pk)); a("v_and_b32 %s, 0xffff0000, %s", vr(regs[1]), vr(pk))
            a("v_lshlrev_b32 %s, 16, %s", vr(regs[2]), vr(pk + 1)); a("v_and_b32 %s, 0xffff0000, %s", vr(regs[3]), vr(pk + 1))
            for e in range(4):
                a("v_add_f32 %s, %s, %s", vr(w + e), vr(w + e), vr(regs[e]))
            bf16_round_pair(a, pk, w, w + 1); bf16_round_pair(a, pk + 1, w + 2, w + 3)
            a("buffer_store_dwordx2 %s, %s, %s, 0 offen offset:%d", vr(pk, 2), vr(voff), sr(srdO, 4), 8 * Q * 2)
        if mt + 1 < c.MT:
            a("v_add_u32 %s, 0x%x, %s", vr(voff), 32 * 640 * 2, vr(voff))
    return c, R.hi

def gen_gate_body(a, wg_sreg, nrows_per_wave=1):
    R = Regs(1, 64); S = Regs(16, 100)
    srdX, srdG, srdW = 4, 8, 12
    sp = S.alloc(2, 2); sp2 = S.alloc(2, 2); sp3 = S.alloc(2, 2)
    a("s_load_dwordx2 %s, s[0:1], %d", sr(sp, 2), KARG['u'])
    a("s_load_dwordx2 %s, s[0:1], %d", sr(sp2, 2), KARG['gw'])
    a("s_load_dwordx2 %s, s[0:1], %d", sr(sp3, 2), KARG['ws'])
    a("s_waitcnt lgkmcnt(0)")
    srd(a, srdX, sr(sp), sr(sp + 1), 2048 * 640 * 2)
    srd(a, srdG, sr(sp2), sr(sp2 + 1), 640 * 2)
    srd(a, srdW, sr(sp3), sr(sp3 + 1), WS_G + 2048 * 4)
    vl = R.alloc(); vw = R.alloc(); vo = R.alloc(); t = R.alloc(4)
    a("v_and_b32 %s, 63, v0", vr(vl))
    a("v_lshrrev_b32 %s, 6, v0", vr(vw))
    s_r = S.alloc()
    a("s_lshl_b32 %s, %s, 2", sr(s_r), sr(wg_sreg))
    a("v_add_u32 %s, %s, %s", vr(vw), sr(s_r), vr(vw))
    a("v_mul_u32_u24 %s, %d, %s", vr(vo), 1280, vr(vw))
    a("v_lshl_add_u32 %s, %s, 2, %s", vr(vo), vr(vl), vr(vo))
    a("v_lshlrev_b32 %s, 2, %s", vr(t), vr(vl))
    xs = R.alloc(5); gs = R.alloc(5)
    for j in range(5):
        a("buffer_load_dword %s, %s, %s, 0 offen offset:%d", vr(xs + j), vr(vo), sr(srdX, 4), j * 256)
        a("buffer_load_dword %s, %s, %s, 0 offen offset:%d", vr(gs + j), vr(t), sr(srdG, 4), j * 256)
    acc = R.alloc()
    a("v_mov_b32 %s, 0", vr(acc))
    a("s_waitcnt vmcnt(0)")
    for j in range(5):
        a("v_lshlrev_b32 %s, 16, %s", vr(t), vr(xs + j)); a("v_lshlrev_b32 %s, 16, %s", vr(t + 1), vr(gs + j))
        a("v_and_b32 %s, 0xffff0000, %s", vr(t + 2), vr(xs + j)); a("v_and_b32 %s, 0xffff0000, %s", vr(t + 3), vr(gs + j))
        a("v_mul_f32 %s, %s, %s", vr(t), vr(t), vr(t + 1)); a("v_mul_f32 %s, %s, %s", vr(t + 2), vr(t + 2), vr(t + 3))
        a("v_cvt_pk_bf16_f32 %s, %s, %s", vr(t), vr(t), vr(t + 2))
        a("v_lshlrev_b32 %s, 16, %s", vr(t + 1), vr(t)); a("v_and_b32 %s, 0xffff0000, %s", vr(t + 2), vr(t))
        a("v_add_f32 %s, %s, %s", vr(acc), vr(acc), vr(t + 1)); a("v_add_f32 %s, %s, %s", vr(acc), vr(acc), vr(t + 2))
    for off in (0x041F, 0x081F, 0x101F, 0x201F, 0x401F):
        a("ds_swizzle_b32 %s, %s offset:0x%x", vr(t), vr(acc), off)
        a("s_waitcnt lgkmcnt(0)")
        a("v_add_f32 %s, %s, %s", vr(acc), vr(acc), vr(t))
    s_a = S.alloc(); s_b = S.alloc()
    a("s_nop 1")
    a("v_readlane_b32 %s, %s, 0", sr(s_a), vr(acc))
    a("v_readlane_b32 %s, %s, 32", sr(s_b), vr(acc))
    a("s_nop 3")
    a("v_mov_b32 %s, %s", vr(t), sr(s_a))
    a("v_add_f32 %s, %s, %s", vr(t), sr(s_b), vr(t))
    a("v_cvt_pk_bf16_f32 %s, %s, %s", vr(t), vr(t), vr(t)); a("v_lshlrev_b32 %s, 16, %s", vr(t), vr(t))
    a("v_mul_f32 %s, %s, %s", vr(t), hexf(-1.4426950408889634), vr(t))
    a("v_exp_f32 %s, %s", vr(t), vr(t)); a("s_nop 0")
    a("v_add_f32 %s, 1.0, %s", vr(t), vr(t))
    a("v_rcp_f32 %s, %s", vr(t), vr(t)); a("s_nop 0")
    a("v_cvt_pk_bf16_f32 %s, %s, %s", vr(t), vr(t), vr(t)); a("v_lshlrev_b32 %s, 16, %s", vr(t), vr(t))
    a("v_lshlrev_b32 %s, 2, %s", vr(vw), vr(vw))
    a("v_cmp_eq_u32 vcc, 0, %s", vr(vl))
    s_e = S.alloc(2, 2)
    a("s_and_saveexec_b64 %s, vcc", sr(s_e, 2))
    a("s_mov_b32 %s, 0x%x", sr(s_a), WS_G)
    a("buffer_store_dword %s, %s, %s, %s offen", vr(t), vr(vw), sr(srdW, 4), sr(s_a))
    a("s_mov_b64 exec, %s", sr(s_e, 2))
    return R.hi
```

```python
import sys
from asmlib import *
from gemm import *
from conv import *
NAME = "gated_mix__ssm_conv_s4d__dense_activation_silu__prompt_kernel"
def build(path, which="all"):
    kernels = []
    a = Asm(); hi = gen_conv_body(a, 2)
    kernels.append(("conv_kernel", 640, CONV_LDS, a, hi))
    a = Asm(); c1, hi = gen_gemm1_body(a, 2)
    kernels.append(("gemm1_kernel", c1.tilesM * c1.tilesN, c1.lds, a, hi))
    a = Asm(); hi = gen_gate_body(a, 2)
    kernels.append(("gate_kernel", 512, 0, a, hi))
    a = Asm(); c2, hi = gen_gemm2_body(a, 2)
    kernels.append(("gemm2_kernel", c2.tilesM * c2.tilesN, max(c2.lds, 64 * 272), a, hi))
    out = ""
    for (n, g, lds, a, hi) in kernels:
        out += "; @launch kernel=%s grid=(%d,1,1) block=(256,1,1) lds=%d\n" % (n, g, lds)
    out += '.amdgcn_target "amdgcn-amd-amdhsa--gfx950"\n.text\n'
    for (n, g, lds, a, hi) in kernels:
        out += kernel_header(n)
        out += "    s_cmp_ge_u32 s2, %d\n    s_cbranch_scc1 L_end_%s\n" % (g, n)
        out += a.text() + "L_end_%s:\n    s_endpgm\n" % n
    out += '.section .rodata,"a"\n'
    for (n, g, lds, a, hi) in kernels:
        out += ".p2align 6\n" + kernel_desc(n, hi)
        print(n, "grid", g, "lds", lds, "vgpr", hi)
    open(path, "w").write(out)
if __name__ == "__main__":
    build(sys.argv[1] if len(sys.argv) > 1 else "full.s")
```

```python
from asmlib import *
from gemm import srd, KARG, WS_AT, WS_G
import math

KTB = 0
KPITCH = 144
UCB = 9216
UCP = 4240 + 16
PKB = UCB + 4 * UCP
PKS = 648 * 4
KDB = PKB + 4 * PKS
REDB = PKB

LOG2E = 1.4426950408889634
INV2PI = 0.15915494309189535

def cexp(a, dr, di, vlr, vw, p_sreg_or_imm, t):
    a("v_mul_f32 %s, %s, %s", vr(t), p_sreg_or_imm, vr(vlr))
    a("v_mul_f32 %s, %s, %s", vr(t + 1), p_sreg_or_imm, vr(vw))
    a("v_exp_f32 %s, %s", vr(t), vr(t))
    a("v_fract_f32 %s, %s", vr(t + 1), vr(t + 1))
    a("v_cos_f32 %s, %s", vr(t + 2), vr(t + 1))
    a("v_sin_f32 %s, %s", vr(t + 1), vr(t + 1))
    a("s_nop 0")
    a("v_mul_f32 %s, %s, %s", vr(dr), vr(t), vr(t + 2))
    a("v_mul_f32 %s, %s, %s", vr(di), vr(t), vr(t + 1))

def csq(a, dr, di, xr, xi, t):
    a("v_mul_f32 %s, %s, %s", vr(t), vr(xi), vr(xi))
    a("v_add_f32 %s, %s, %s", vr(t + 1), vr(xr), vr(xr))
    a("v_fma_f32 %s, %s, %s, -%s", vr(dr), vr(xr), vr(xr), vr(t))
    a("v_mul_f32 %s, %s, %s", vr(di), vr(t + 1), vr(xi))

def cmul(a, dr, di, ar, ai, br, bi):
    a("v_mul_f32 %s, %s, %s", vr(dr), vr(ar), vr(br))
    a("v_mul_f32 %s, %s, %s", vr(di), vr(ar), vr(bi))
    a("v_fma_f32 %s, -%s, %s, %s", vr(dr), vr(ai), vr(bi), vr(dr))
    a("v_fma_f32 %s, %s, %s, %s", vr(di), vr(ai), vr(br), vr(di))

def split_pair(a, hi, lo, x0, x1, t):
    a("v_cvt_pk_bf16_f32 %s, %s, %s", vr(hi), vr(x0), vr(x1))
    a("v_lshlrev_b32 %s, 16, %s", vr(t), vr(hi))
    a("v_and_b32 %s, 0xffff0000, %s", vr(t + 1), vr(hi))
    a("v_sub_f32 %s, %s, %s", vr(t), vr(x0), vr(t))
    a("v_sub_f32 %s, %s, %s", vr(t + 1), vr(x1), vr(t + 1))
    a("v_cvt_pk_bf16_f32 %s, %s, %s", vr(lo), vr(t), vr(t + 1))


KDB = PKB
CNB = PKB + 4 * PKS
REDB = PKB
CONV_LDS = REDB + 32768

def pk_csq(a, d, x):
    a("v_pk_mul_f32 %s, %s, %s op_sel_hi:[0,1]", vr(d, 2), vr(x, 2), vr(x, 2))
    a("v_pk_fma_f32 %s, %s, %s, %s op_sel:[1,1,0] op_sel_hi:[0,1,1] neg_lo:[1,0,0]", vr(d, 2), vr(x, 2), vr(x, 2), vr(d, 2))
def pk_cmul(a, d, x, y):
    a("v_pk_mul_f32 %s, %s, %s op_sel_hi:[0,1]", vr(d, 2), vr(x, 2), vr(y, 2))
    a("v_pk_fma_f32 %s, %s, %s, %s op_sel:[1,1,0] op_sel_hi:[1,0,1] neg_lo:[1,0,0]", vr(d, 2), vr(x, 2), vr(y, 2), vr(d, 2))
def split2(a, hi, lo, x, t, negim=False):
    n = "-" if negim else ""
    a("v_cvt_pk_bf16_f32 %s, %s, %s%s", vr(hi), vr(x), n, vr(x + 1))
    a("v_lshlrev_b32 %s, 16, %s", vr(t), vr(hi))
    a("v_and_b32 %s, 0xffff0000, %s", vr(t + 1), vr(hi))
    a("v_sub_f32 %s, %s, %s", vr(t), vr(x), vr(t))
    a("v_sub_f32 %s, %s%s, %s", vr(t + 1), n, vr(x + 1), vr(t + 1))
    a("v_cvt_pk_bf16_f32 %s, %s, %s", vr(lo), vr(t), vr(t + 1))

def gen_conv_body(a, wg_sreg):
    R = Regs(1, 256); S = Regs(16, 100)
    sU, sP0, sP1, sW = 4, 8, 12, S.alloc(4, 4)
    sP2 = S.alloc(4, 4); sP3 = S.alloc(4, 4); sP4 = S.alloc(4, 4); sP5 = S.alloc(4, 4)
    ptr = S.alloc(16, 4)
    a("s_load_dwordx16 %s, s[0:1], 0", sr(ptr, 16))
    pws = S.alloc(2, 2)
    a("s_load_dwordx2 %s, s[0:1], %d", sr(pws, 2), KARG['ws'])
    a("s_waitcnt lgkmcnt(0)")
    srd(a, sU, sr(ptr), sr(ptr + 1), 2048 * 640 * 2)
    srd(a, sP0, sr(ptr + 2), sr(ptr + 3), 640 * 128 * 2)
    srd(a, sP1, sr(ptr + 4), sr(ptr + 5), 640 * 128 * 2)
    srd(a, sP2, sr(ptr + 6), sr(ptr + 7), 640 * 128 * 2)
    srd(a, sP3, sr(ptr + 8), sr(ptr + 9), 640 * 128 * 2)
    srd(a, sP4, sr(ptr + 10), sr(ptr + 11), 640 * 2)
    srd(a, sP5, sr(ptr + 12), sr(ptr + 13), 640 * 2)
    srd(a, sW, sr(pws), sr(pws + 1), WS_AT + 640 * 2048 * 2)
    s_d = wg_sreg
    vlane = R.alloc(); vt = R.alloc(8, 2)
    s_wave = S.alloc(); s_t0 = S.alloc(); s_t1 = S.alloc(); se = S.alloc(2, 2)
    a("v_and_b32 %s, 63, v0", vr(vlane))
    a("v_lshrrev_b32 %s, 6, v0", vr(vt)); a("s_nop 0")
    a("v_readfirstlane_b32 %s, %s", sr(s_wave), vr(vt)); a("s_nop 4")
    vp = R.alloc(4); vdt = R.alloc(); vdsk = R.alloc()
    a("v_and_b32 %s, 127, v0", vr(vt)); a("v_lshlrev_b32 %s, 1, %s", vr(vt), vr(vt))
    a("s_lshl_b32 %s, %s, 8", sr(s_t0), sr(s_d))
    for i, srdp in enumerate((sP0, sP1, sP2, sP3)):
        a("buffer_load_ushort %s, %s, %s, %s offen", vr(vp + i), vr(vt), sr(srdp, 4), sr(s_t0))
    a("v_mov_b32 %s, 0", vr(vt + 1))
    a("s_lshl_b32 %s, %s, 1", sr(s_t1), sr(s_d))
    a("buffer_load_ushort %s, %s, %s, %s offen", vr(vdt), vr(vt + 1), sr(sP4, 4), sr(s_t1))
    a("buffer_load_ushort %s, %s, %s, %s offen", vr(vdsk), vr(vt + 1), sr(sP5, 4), sr(s_t1))
    vu = R.alloc(8)
    a("v_mul_u32_u24 %s, 1280, v0", vr(vt + 2))
    import os
    for i in range(8 if not os.environ.get("NOU") else 0):
        a("s_add_u32 %s, %s, %d", sr(s_t0), sr(s_t1), i * 256 * 1280)
        a("buffer_load_ushort %s, %s, %s, %s offen", vr(vu + i), vr(vt + 2), sr(sU, 4), sr(s_t0))
    z4 = R.alloc(4, 4)
    for i in range(4): a("v_mov_b32 %s, 0", vr(z4 + i))
    a("v_lshlrev_b32 %s, 4, v0", vr(vt))
    a("ds_write_b128 %s, %s offset:%d", vr(vt), vr(z4, 4), KTB)
    a("v_cmp_gt_u32 vcc, 64, v0")
    a("s_and_saveexec_b64 %s, vcc", sr(se, 2))
    a("ds_write_b128 %s, %s offset:%d", vr(vt), vr(z4, 4), KTB + 4096)
    a("v_lshrrev_b32 %s, 4, v0", vr(vt + 1)); a("v_mul_u32_u24 %s, %d, %s", vr(vt + 1), UCP, vr(vt + 1))
    a("v_and_b32 %s, 15, v0", vr(vt + 2)); a("v_lshl_add_u32 %s, %s, 4, %s", vr(vt + 1), vr(vt + 2), vr(vt + 1))
    a("ds_write_b128 %s, %s offset:%d", vr(vt + 1), vr(z4, 4), UCB)
    a("s_mov_b64 exec, %s", sr(se, 2))
    c = R.alloc(12, 4); tt = R.alloc(4, 2); z = R.alloc(2, 2)
    a("s_waitcnt vmcnt(8)")
    a("v_lshlrev_b32 %s, 16, %s", vr(vdsk), vr(vdsk))
    a("v_lshlrev_b32 %s, 16, %s", vr(vdt), vr(vdt))
    a("v_mul_f32 %s, %s, %s", vr(vdt), hexf(LOG2E), vr(vdt))
    a("v_exp_f32 %s, %s", vr(vdt), vr(vdt)); a("s_nop 0")
    a("v_cvt_pk_bf16_f32 %s, %s, %s", vr(vdt), vr(vdt), vr(vdt)); a("v_lshlrev_b32 %s, 16, %s", vr(vdt), vr(vdt))
    for i in range(4): a("v_lshlrev_b32 %s, 16, %s", vr(vp + i), vr(vp + i))
    a("v_mul_f32 %s, %s, %s", vr(c), hexf(LOG2E), vr(vp))
    a("v_exp_f32 %s, %s", vr(c), vr(c)); a("s_nop 0")
    a("v_cvt_pk_bf16_f32 %s, %s, %s", vr(c), vr(c), vr(c)); a("v_lshlrev_b32 %s, 16, %s", vr(c), vr(c))
    a("v_mul_f32 %s, %s, %s", vr(c), vr(c), vr(vdt)); a("v_mul_f32 %s, %s, %s", vr(c), hexf(-LOG2E), vr(c))
    a("v_mul_f32 %s, %s, %s", vr(c + 1), vr(vp + 1), vr(vdt)); a("v_mul_f32 %s, %s, %s", vr(c + 1), hexf(INV2PI), vr(c + 1))
    a("v_mul_f32 %s, %s, %s", vr(c + 2), vr(vp + 2), vr(vdt)); a("v_add_f32 %s, %s, %s", vr(c + 2), vr(c + 2), vr(c + 2))
    a("v_mul_f32 %s, %s, %s", vr(c + 3), vr(vp + 3), vr(vdt)); a("v_add_f32 %s, %s, %s", vr(c + 3), vr(c + 3), vr(c + 3))
    for j in range(1, 4):
        cexp(a, z, z + 1, c, c + 1, hexf(float(2 ** (7 + j))), tt)
        pk_cmul(a, c + 2 + 2 * j, c + 2, z)
    a("v_and_b32 %s, 127, v0", vr(vt)); a("v_mul_u32_u24 %s, 48, %s", vr(vt), vr(vt))
    a("v_cmp_gt_u32 vcc, 128, v0")
    a("s_and_saveexec_b64 %s, vcc", sr(se, 2))
    a("ds_write_b128 %s, %s offset:%d", vr(vt), vr(c, 4), CNB)
    a("ds_write_b128 %s, %s offset:%d", vr(vt), vr(c + 4, 4), CNB + 16)
    a("ds_write_b64 %s, %s offset:%d", vr(vt), vr(c + 8, 2), CNB + 32)
    a("s_mov_b64 exec, %s", sr(se, 2))
    a("s_waitcnt lgkmcnt(0)")
    a("s_barrier")
    a("s_waitcnt vmcnt(0)")
    a("v_lshlrev_b32 %s, 1, v0", vr(vt))
    for i in range(8):
        for r in range(4):
            a("ds_write_b16 %s, %s offset:%d", vr(vt), vr(vu + i), UCB + r * UCP + (i * 256 + r + 64) * 2)
    mk = R.mark()
    Xh = [R.alloc(4, 4) for j in range(4)]; Xl = [R.alloc(4, 4) for j in range(4)]
    Yh = [R.alloc(4, 4) for j in range(4)]; Yl = [R.alloc(4, 4) for j in range(4)]
    kd = R.alloc(16, 4)
    for q in range(16): a("v_mov_b32 %s, 0", vr(kd + q))
    vl16 = R.alloc(); pv = R.alloc(); vcn = R.alloc()
    a("v_and_b32 %s, 15, %s", vr(vl16), vr(vlane))
    a("v_cvt_f32_u32 %s, %s", vr(vl16), vr(vl16))
    a("v_mul_f32 %s, %s, %s", vr(pv), hexf(16.0), vr(vl16))
    a("v_lshrrev_b32 %s, 4, %s", vr(vcn), vr(vlane)); a("v_mul_u32_u24 %s, %d, %s", vr(vcn), 4 * 48, vr(vcn))
    a("s_mul_i32 %s, %s, %d", sr(s_t0), sr(s_wave), 32 * 48)
    a("v_add_u32 %s, %s, %s", vr(vcn), sr(s_t0), vr(vcn))
    cc = [R.alloc(12, 4) for _ in range(2)]
    w = R.alloc(2, 2); w2 = R.alloc(2, 2); x = R.alloc(2, 2)
    def ldc(m):
        off = CNB + ((m // 4) * 16 + (m % 4)) * 48
        b = cc[m % 2]
        a("ds_read_b128 %s, %s offset:%d", vr(b, 4), vr(vcn), off)
        a("ds_read_b128 %s, %s offset:%d", vr(b + 4, 4), vr(vcn), off + 16)
        a("ds_read_b64 %s, %s offset:%d", vr(b + 8, 2), vr(vcn), off + 32)
    ldc(0)
    import os
    for m in range(8 if not os.environ.get("NOKGEN") else 0):
        s_, i = divmod(m, 4)
        if m + 1 < 8: ldc(m + 1)
        a("s_waitcnt lgkmcnt(%d)", 3 if m + 1 < 8 else 0)
        cb = cc[m % 2]
        cexp(a, w, w + 1, cb, cb + 1, vr(vl16), tt)
        for j in range(4):
            split2(a, Yh[j] + i, Yl[j] + i, w, tt)
            if j < 3:
                pk_csq(a, w2, w); w, w2 = w2, w
        cexp(a, w, w + 1, cb, cb + 1, vr(pv), tt)
        for j in range(4):
            if j > 0:
                pk_csq(a, w2, w); w, w2 = w2, w
            pk_cmul(a, x, cb + 2 + 2 * j, w)
            split2(a, Xh[j] + i, Xl[j] + i, x, tt, negim=True)
        if i == 3:
            a("s_nop 1")
            for j in range(4):
                for (A_, B_) in ((Xh, Yh), (Xh, Yl), (Xl, Yh)):
                    a("v_mfma_f32_16x16x32_bf16 %s, %s, %s, %s", vr(kd + 4 * j, 4), vr(A_[j], 4), vr(B_[j], 4), vr(kd + 4 * j, 4))
    a("s_nop 7"); a("s_nop 1")
    basej = [0, 256, 384, 512]
    a("v_lshrrev_b32 %s, 4, %s", vr(vt), vr(vlane)); a("v_lshlrev_b32 %s, 6, %s", vr(vt), vr(vt))
    a("v_and_b32 %s, 15, %s", vr(vt + 1), vr(vlane)); a("v_add_u32 %s, %s, %s", vr(vt), vr(vt), vr(vt + 1))
    a("v_lshlrev_b32 %s, 2, %s", vr(vt), vr(vt))
    a("s_mul_i32 %s, %s, %d", sr(s_t0), sr(s_wave), PKS)
    a("v_add_u32 %s, %s, %s", vr(vt), sr(s_t0), vr(vt))
    for r in range(4):
        a("ds_write_b32 %s, %s offset:%d", vr(vt), vr(kd + r), KDB + r * 64)
    a("v_cmp_gt_u32 vcc, 33, %s", vr(vlane))
    a("s_and_saveexec_b64 %s, vcc", sr(se, 2))
    a("ds_write_b32 %s, %s offset:%d", vr(vt), vr(kd + 12), KDB + basej[3] * 4)
    a("v_cmp_gt_u32 vcc, 32, %s", vr(vlane))
    a("s_and_b64 exec, exec, vcc")
    for j in range(1, 4):
        for r in range(4):
            if j == 3 and r == 0: continue
            a("ds_write_b32 %s, %s offset:%d", vr(vt), vr(kd + 4 * j + r), KDB + basej[j] * 4 + r * 64)
    a("s_mov_b64 exec, %s", sr(se, 2))
    a("s_waitcnt lgkmcnt(0)")
    a("s_barrier")
    R.release(mk)
    vs = R.alloc(); vt0 = R.alloc(); kv = R.alloc(32); pk4 = R.alloc(4, 4)
    a("v_lshlrev_b32 %s, 3, v0", vr(vt0))
    a("v_or_b32 %s, 1, %s", vr(vt), vr(vt0))
    a("v_ffbh_u32 %s, %s", vr(vs), vr(vt))
    a("v_sub_u32 %s, 24, %s", vr(vs), vr(vs))
    a("v_max_i32 %s, 0, %s", vr(vs), vr(vs))
    vhm = R.alloc(); vm1 = R.alloc()
    a("v_lshlrev_b32 %s, %s, 1", vr(vhm), vr(vs)); a("v_lshrrev_b32 %s, 1, %s", vr(vhm), vr(vhm))
    a("v_min_u32 %s, 1, %s", vr(vm1), vr(vs))
    a("v_sub_u32 %s, %s, %s", vr(vhm), vr(vhm), vr(vm1))
    for i in range(8):
        a("v_add_u32 %s, %d, %s", vr(vt), i, vr(vt0))
        a("v_lshrrev_b32 %s, %s, %s", vr(vt + 1), vr(vs), vr(vt))
        a("v_and_b32 %s, %s, %s", vr(vt + 1), vr(vm1), vr(vt + 1))
        a("v_add3_u32 %s, %s, %s, %s", vr(vt + 1), vr(vt + 1), vr(vhm), vr(vt))
        a("v_lshrrev_b32 %s, %s, %s", vr(vt + 1), vr(vs), vr(vt + 1))
        a("v_lshl_add_u32 %s, %s, 7, %s", vr(vt + 1), vr(vs), vr(vt + 1))
        a("v_lshlrev_b32 %s, 2, %s", vr(vt + 1), vr(vt + 1))
        for w_ in range(4):
            a("ds_read_b32 %s, %s offset:%d", vr(kv + 8 * w_ + i), vr(vt + 1), KDB + w_ * PKS)
    a("s_waitcnt lgkmcnt(0)")
    for i in range(8):
        a("v_add_f32 %s, %s, %s", vr(kv + i), vr(kv + i), vr(kv + 8 + i))
        a("v_add_f32 %s, %s, %s", vr(kv + 16 + i), vr(kv + 16 + i), vr(kv + 24 + i))
    for i in range(8):
        a("v_add_f32 %s, %s, %s", vr(kv + i), vr(kv + i), vr(kv + 16 + i))
    for i in range(4):
        a("v_cvt_pk_bf16_f32 %s, %s, %s", vr(pk4 + i), vr(kv + 2 * i), vr(kv + 2 * i + 1))
    a("v_lshrrev_b32 %s, 3, v0", vr(vt)); a("v_mul_u32_u24 %s, %d, %s", vr(vt), KPITCH, vr(vt))
    a("v_and_b32 %s, 7, v0", vr(vt + 1)); a("v_lshl_add_u32 %s, %s, 4, %s", vr(vt), vr(vt + 1), vr(vt))
    a("ds_write_b128 %s, %s offset:%d", vr(vt), vr(pk4, 4), KTB + 32 * KPITCH)
    a("s_waitcnt lgkmcnt(0)")
    a("s_barrier")
    R.release(mk)
    vka = R.alloc(); vub = R.alloc()
    a("v_and_b32 %s, 31, %s", vr(vt), vr(vlane)); a("v_add_u32 %s, 25, %s", vr(vt), vr(vt))
    a("v_mul_u32_u24 %s, %d, %s", vr(vka), KPITCH, vr(vt))
    a("v_lshrrev_b32 %s, 5, %s", vr(vt), vr(vlane)); a("v_lshl_add_u32 %s, %s, 4, %s", vr(vka), vr(vt), vr(vka))
    a("s_mul_i32 %s, %s, %d", sr(s_t0), sr(s_wave), 8 * KPITCH)
    a("v_sub_u32 %s, %s, %s", vr(vka), vr(vka), sr(s_t0))
    a("v_lshrrev_b32 %s, 2, %s", vr(vt), vr(vlane)); a("v_and_b32 %s, 3, %s", vr(vt), vr(vt))
    a("v_mul_u32_u24 %s, %d, %s", vr(vub), UCP, vr(vt))
    a("v_lshrrev_b32 %s, 4, %s", vr(vt), vr(vlane)); a("v_and_b32 %s, 1, %s", vr(vt), vr(vt)); a("v_lshl_add_u32 %s, %s, 5, %s", vr(vub), vr(vt), vr(vub))
    a("v_lshrrev_b32 %s, 5, %s", vr(vt), vr(vlane)); a("v_lshlrev_b32 %s, 4, %s", vr(vt), vr(vt)); a("v_sub_u32 %s, %s, %s", vr(vub), vr(vub), vr(vt))
    a("v_and_b32 %s, 3, %s", vr(vt), vr(vlane)); a("v_lshl_add_u32 %s, %s, 3, %s", vr(vub), vr(vt), vr(vub))
    a("s_lshl_b32 %s, %s, 10", sr(s_t0), sr(s_wave))
    a("v_add_u32 %s, %s, %s", vr(vub), sr(s_t0), vr(vub))
    acc = [R.alloc(16, 4) for _ in range(2)]
    for nu in range(2):
        for q in range(16): a("v_mov_b32 %s, 0", vr(acc[nu] + q))
    fK = [R.alloc(4, 4) for _ in range(4)]
    fU = {}
    ufr = [R.alloc(4, 4) for _ in range(6)]
    for jj in range(8 if not os.environ.get("NOCONV") else 0):
        for kap in range(4):
            a("ds_read_b128 %s, %s offset:%d", vr(fK[kap], 4), vr(vka), KTB + (7 - jj) * KPITCH + 32 * kap)
        cs = sorted(set(32 * nu - 16 * kap for nu in range(2) for kap in range(4)))
        for ci, c in enumerate(cs):
            off = UCB + (64 * jj + c + 64) * 2
            a("ds_read_b64_tr_b16 %s, %s offset:%d", vr(ufr[ci], 2), vr(vub), off)
            a("ds_read_b64_tr_b16 %s, %s offset:%d", vr(ufr[ci] + 2, 2), vr(vub), off - 8)
        a("s_waitcnt lgkmcnt(0)")
        for kap in range(4):
            for nu in range(2):
                ci = cs.index(32 * nu - 16 * kap)
                a("v_mfma_f32_32x32x16_bf16 %s, %s, %s, %s", vr(acc[nu], 16), vr(fK[kap], 4), vr(ufr[ci], 4), vr(acc[nu], 16))
    a("s_nop 15"); a("s_nop 3")
    a("v_lshrrev_b32 %s, 5, %s", vr(vt), vr(vlane)); a("v_lshlrev_b32 %s, 10, %s", vr(vt), vr(vt))
    a("v_and_b32 %s, 31, %s", vr(vt + 1), vr(vlane)); a("v_lshl_add_u32 %s, %s, 2, %s", vr(vt), vr(vt + 1), vr(vt))
    a("s_lshl_b32 %s, %s, 13", sr(s_t0), sr(s_wave))
    a("v_add_u32 %s, %s, %s", vr(vt), sr(s_t0), vr(vt))
    for nu in range(2):
        for q in range(16):
            I = 8 * (q // 4) + (q % 4)
            a("ds_write_b32 %s, %s offset:%d", vr(vt), vr(acc[nu] + q), REDB + I * 256 + nu * 128)
    a("s_waitcnt lgkmcnt(0)")
    a("s_barrier")
    a("v_lshlrev_b32 %s, 5, v0", vr(vt))
    y = R.alloc(8, 4); yp = [R.alloc(8, 4) for _ in range(3)]
    a("ds_read_b128 %s, %s offset:%d", vr(y, 4), vr(vt), REDB); a("ds_read_b128 %s, %s offset:%d", vr(y + 4, 4), vr(vt), REDB + 16)
    for w_ in range(3):
        a("ds_read_b128 %s, %s offset:%d", vr(yp[w_], 4), vr(vt), REDB + 8192 * (w_ + 1)); a("ds_read_b128 %s, %s offset:%d", vr(yp[w_] + 4, 4), vr(vt), REDB + 8192 * (w_ + 1) + 16)
    a("v_lshlrev_b32 %s, 4, v0", vr(vt))
    uu = R.alloc(4, 4)
    a("ds_read_b128 %s, %s offset:%d", vr(uu, 4), vr(vt), UCB + 64 * 2)
    a("s_waitcnt lgkmcnt(0)")
    for k in range(8):
        a("v_add_f32 %s, %s, %s", vr(y + k), vr(y + k), vr(yp[0] + k))
        a("v_add_f32 %s, %s, %s", vr(yp[1] + k), vr(yp[1] + k), vr(yp[2] + k))
    for k in range(8):
        a("v_add_f32 %s, %s, %s", vr(y + k), vr(y + k), vr(yp[1] + k))
    o4 = R.alloc(4, 4)
    for k in range(4):
        a("v_cvt_pk_bf16_f32 %s, %s, %s", vr(vt), vr(y + 2 * k), vr(y + 2 * k + 1))
        a("v_lshlrev_b32 %s, 16, %s", vr(y + 2 * k), vr(vt)); a("v_and_b32 %s, 0xffff0000, %s", vr(y + 2 * k + 1), vr(vt))
        a("v_lshlrev_b32 %s, 16, %s", vr(vt + 1), vr(uu + k)); a("v_and_b32 %s, 0xffff0000, %s", vr(vt + 2), vr(uu + k))
        a("v_mul_f32 %s, %s, %s", vr(vt + 1), vr(vdsk), vr(vt + 1)); a("v_mul_f32 %s, %s, %s", vr(vt + 2), vr(vdsk), vr(vt + 2))
        a("v_cvt_pk_bf16_f32 %s, %s, %s", vr(vt), vr(vt + 1), vr(vt + 2))
        a("v_lshlrev_b32 %s, 16, %s", vr(vt + 1), vr(vt)); a("v_and_b32 %s, 0xffff0000, %s", vr(vt + 2), vr(vt))
        a("v_add_f32 %s, %s, %s", vr(vt + 1), vr(vt + 1), vr(y + 2 * k)); a("v_add_f32 %s, %s, %s", vr(vt + 2), vr(vt + 2), vr(y + 2 * k + 1))
        a("v_cvt_pk_bf16_f32 %s, %s, %s", vr(o4 + k), vr(vt + 1), vr(vt + 2))
    a("v_lshlrev_b32 %s, 4, v0", vr(vt))
    a("s_lshl_b32 %s, %s, 12", sr(s_t0), sr(s_d)); a("s_add_u32 %s, %s, 0x%x", sr(s_t0), sr(s_t0), WS_AT)
    a("buffer_store_dwordx4 %s, %s, %s, %s offen", vr(o4, 4), vr(vt), sr(sW, 4), sr(s_t0))
    return R.hi
```

```python
from asmlib import *

WS_H   = 0
WS_AT  = 8 << 20
WS_G   = 12 << 20

KARG = dict(u=0, lar=8, aim=16, cr=24, ci=32, ldt=40, dsk=48, bx=56, w1=64, w2=72, gw=80, out=88, dbg=96, ws=104)

def srd(a, s, base_lo, base_hi, size):
    a("s_mov_b32 %s, %s", sr(s), base_lo)
    a("s_mov_b32 %s, %s", sr(s+1), base_hi)
    a("s_mov_b32 %s, 0x%x", sr(s+2), size)
    a("s_mov_b32 %s, 0x00020000", sr(s+3))

def fA(row, BK):
    return ((row >> 1) & 7) if BK == 64 else ((row >> 2) & 3)
def fB(k, BN):
    if BN == 128: return (k & 3) << 2
    if BN == 64: return ((k >> 1) & 1) << 2
    raise ValueError
class GemmCfg:
    def __init__(s, M, N, K, BM, BN, BK, lda, ldb, nbuf=3):
        s.M, s.N, s.K, s.BM, s.BN, s.BK, s.lda, s.ldb, s.nbuf = M, N, K, BM, BN, BK, lda, ldb, nbuf
        s.MT = BM // 64; s.NT = BN // 64
        s.KS = BK // 16
        s.nst = K // BK
        assert K % BK == 0
        s.abytes = BM * BK * 2; s.bbytes = BK * BN * 2
        s.nAw = s.abytes // 1024 // 4; s.nBw = s.bbytes // 1024 // 4
        s.tilesM = M // BM; s.tilesN = (N + BN - 1) // BN
        s.lds = nbuf * (s.abytes + s.bbytes)

import os
DBG_NOMFMA = os.environ.get("NOMFMA"); DBG_NODMA = os.environ.get("NODMA"); DBG_NOLDS = os.environ.get("NOLDS")
def emit_gemm_mainloop(a, c, R, S, srdA, srdB, s_row0, s_col0, s_wave, lds_base=0):
    MT, NT, KS, BK, BM, BN = c.MT, c.NT, c.KS, c.BK, c.BM, c.BN
    RA = BK * 2; RB = BN * 2
    chA = RA // 16; chB = RB // 16
    vlane = R.alloc(); vt0 = R.alloc(); vt1 = R.alloc(); vt2 = R.alloc()
    a("v_and_b32 %s, 63, v0", vr(vlane))
    a("v_lshrrev_b32 %s, 6, v0", vr(vt0)); a("s_nop 0")
    a("v_readfirstlane_b32 %s, %s", sr(s_wave), vr(vt0))
    a("s_nop 4")
    s_wm = S.alloc(); s_wn = S.alloc(); s_t0 = S.alloc(); s_t1 = S.alloc()
    a("s_lshr_b32 %s, %s, 1", sr(s_wm), sr(s_wave))
    a("s_and_b32 %s, %s, 1", sr(s_wn), sr(s_wave))
    vdA = [R.alloc() for _ in range(c.nAw)]
    vdB = [R.alloc() for _ in range(c.nBw)]
    lg = lambda x: x.bit_length() - 1
    for i in range(c.nAw):
        a("s_mul_i32 %s, %s, %d", sr(s_t0), sr(s_wave), c.nAw * 64)
        a("s_add_u32 %s, %s, %d", sr(s_t0), sr(s_t0), i * 64)
        a("v_add_u32 %s, %s, %s", vr(vt0), sr(s_t0), vr(vlane))
        a("v_lshrrev_b32 %s, %d, %s", vr(vt1), lg(chA), vr(vt0))
        a("v_and_b32 %s, %d, %s", vr(vt0), chA - 1, vr(vt0))
        if BK == 64:
            a("v_lshrrev_b32 %s, 1, %s", vr(vt2), vr(vt1)); a("v_and_b32 %s, 7, %s", vr(vt2), vr(vt2))
        else:
            a("v_lshrrev_b32 %s, 2, %s", vr(vt2), vr(vt1)); a("v_and_b32 %s, 3, %s", vr(vt2), vr(vt2))
        a("v_xor_b32 %s, %s, %s", vr(vt0), vr(vt0), vr(vt2))
        a("v_add_u32 %s, %s, %s", vr(vt1), sr(s_row0), vr(vt1))
        a("s_mov_b32 %s, %d", sr(s_t1), c.lda * 2)
        a("v_mul_lo_u32 %s, %s, %s", vr(vt1), vr(vt1), sr(s_t1))
        a("v_lshl_add_u32 %s, %s, 4, %s", vr(vdA[i]), vr(vt0), vr(vt1))
    for i in range(c.nBw):
        a("s_mul_i32 %s, %s, %d", sr(s_t0), sr(s_wave), c.nBw * 64)
        a("s_add_u32 %s, %s, %d", sr(s_t0), sr(s_t0), i * 64)
        a("v_add_u32 %s, %s, %s", vr(vt0), sr(s_t0), vr(vlane))
        a("v_lshrrev_b32 %s, %d, %s", vr(vt1), lg(chB), vr(vt0))
        a("v_and_b32 %s, %d, %s", vr(vt0), chB - 1, vr(vt0))
        if BN == 128:
            a("v_and_b32 %s, 3, %s", vr(vt2), vr(vt1)); a("v_lshlrev_b32 %s, 2, %s", vr(vt2), vr(vt2))
        else:
            a("v_lshrrev_b32 %s, 1, %s", vr(vt2), vr(vt1)); a("v_and_b32 %s, 1, %s", vr(vt2), vr(vt2)); a("v_lshlrev_b32 %s, 2, %s", vr(vt2), vr(vt2))
        a("v_xor_b32 %s, %s, %s", vr(vt0), vr(vt0), vr(vt2))
        a("s_mov_b32 %s, %d", sr(s_t1), c.ldb * 2)
        a("v_mul_lo_u32 %s, %s, %s", vr(vt1), vr(vt1), sr(s_t1))
        a("v_lshl_add_u32 %s, %s, 4, %s", vr(vt0), vr(vt0), vr(vt1))
        a("s_lshl_b32 %s, %s, 1", sr(s_t1), sr(s_col0))
        a("v_add_u32 %s, %s, %s", vr(vdB[i]), sr(s_t1), vr(vt0))
    Aoff = lambda b: lds_base + b * c.abytes
    Boff = lambda b: lds_base + c.nbuf * c.abytes + b * c.bbytes
    s_mA = S.alloc(); s_mB = S.alloc()
    a("s_mul_i32 %s, %s, %d", sr(s_mA), sr(s_wave), c.nAw * 1024)
    a("s_mul_i32 %s, %s, %d", sr(s_mB), sr(s_wave), c.nBw * 1024)
    s_soA = S.alloc(); s_soB = S.alloc()
    def issue_stage(st):
        if DBG_NODMA: return
        b = st % c.nbuf
        a("s_mov_b32 %s, %d", sr(s_soA), st * BK * 2)
        a("s_mov_b32 %s, %d", sr(s_soB), st * BK * c.ldb * 2)
        for i in range(c.nAw):
            a("s_add_u32 m0, %s, %d", sr(s_mA), Aoff(b) + i * 1024)
            a("s_nop 0")
            a("buffer_load_dwordx4 %s, %s, %s offen lds", vr(vdA[i]), sr(srdA, 4), sr(s_soA))
        for i in range(c.nBw):
            a("s_add_u32 m0, %s, %d", sr(s_mB), Boff(b) + i * 1024)
            a("s_nop 0")
            a("buffer_load_dwordx4 %s, %s, %s offen lds", vr(vdB[i]), sr(srdB, 4), sr(s_soB))
    vaA = [[R.alloc() for _ in range(KS)] for _ in range(MT)]
    a("v_and_b32 %s, 31, %s", vr(vt0), vr(vlane))
    a("v_lshrrev_b32 %s, 5, %s", vr(vt1), vr(vlane))
    for mt in range(MT):
        a("s_mul_i32 %s, %s, %d", sr(s_t0), sr(s_wm), BM // 2)
        a("s_add_u32 %s, %s, %d", sr(s_t0), sr(s_t0), mt * 32)
        a("v_add_u32 %s, %s, %s", vr(vt2), sr(s_t0), vr(vt0))
        vf = R.alloc()
        if BK == 64:
            a("v_lshrrev_b32 %s, 1, %s", vr(vf), vr(vt2)); a("v_and_b32 %s, 7, %s", vr(vf), vr(vf))
        else:
            a("v_lshrrev_b32 %s, 2, %s", vr(vf), vr(vt2)); a("v_and_b32 %s, 3, %s", vr(vf), vr(vf))
        for kap in range(KS):
            t = vaA[mt][kap]
            a("v_add_u32 %s, %d, %s", vr(t), 2 * kap, vr(vt1))
            a("v_xor_b32 %s, %s, %s", vr(t), vr(t), vr(vf))
            a("v_lshlrev_b32 %s, 4, %s", vr(t), vr(t))
            a("v_lshl_add_u32 %s, %s, %d, %s", vr(t), vr(vt2), lg(RA), vr(t))
        R.release(vf)
    vaA2 = None
    if Aoff(c.nbuf - 1) >= 65536:
        vaA2 = [[R.alloc() for _ in range(KS)] for _ in range(MT)]
        for mt in range(MT):
            for kap in range(KS):
                a("v_add_u32 %s, 0x10000, %s", vr(vaA2[mt][kap]), vr(vaA[mt][kap]))
    vaB = [R.alloc() for _ in range(NT)]
    vr_ = R.alloc(); vk = R.alloc()
    a("v_lshrrev_b32 %s, 2, %s", vr(vr_), vr(vlane)); a("v_and_b32 %s, 3, %s", vr(vr_), vr(vr_))
    a("v_lshrrev_b32 %s, 5, %s", vr(vk), vr(vlane)); a("v_lshl_add_u32 %s, %s, 3, %s", vr(vk), vr(vk), vr(vr_))
    for nt in range(NT):
        t = vaB[nt]
        a("v_lshrrev_b32 %s, 4, %s", vr(vt0), vr(vlane)); a("v_and_b32 %s, 1, %s", vr(vt0), vr(vt0)); a("v_lshlrev_b32 %s, 5, %s", vr(vt0), vr(vt0))
        a("v_and_b32 %s, 3, %s", vr(vt1), vr(vlane)); a("v_lshl_add_u32 %s, %s, 3, %s", vr(vt0), vr(vt1), vr(vt0))
        a("s_mul_i32 %s, %s, %d", sr(s_t0), sr(s_wn), BN)
        a("s_add_u32 %s, %s, %d", sr(s_t0), sr(s_t0), 64 * nt)
        a("v_add_u32 %s, %s, %s", vr(vt0), sr(s_t0), vr(vt0))
        if BN == 128:
            a("v_lshlrev_b32 %s, 6, %s", vr(vt1), vr(vr_))
        else:
            a("v_lshrrev_b32 %s, 1, %s", vr(vt1), vr(vr_)); a("v_lshlrev_b32 %s, 6, %s", vr(vt1), vr(vt1))
        a("v_xor_b32 %s, %s, %s", vr(vt0), vr(vt0), vr(vt1))
        a("v_lshl_add_u32 %s, %s, %d, %s", vr(t), vr(vk), lg(RB), vr(vt0))
        a("v_add_u32 %s, %d, %s", vr(t), Boff(0), vr(t))
    acc = [[R.alloc(16, 4) for _ in range(MT)] for _ in range(NT)]
    for nt in range(NT):
        for mt in range(MT):
            for r in range(16):
                a("v_mov_b32 %s, 0", vr(acc[nt][mt] + r))
    fX = [[R.alloc(4, 4) for _ in range(MT)] for _ in range(2)]
    fW = [[R.alloc(4, 4) for _ in range(NT)] for _ in range(2)]
    def load_frags(st, kap, sset):
        b = st % c.nbuf
        n = 0
        if DBG_NOLDS: return 0
        for mt in range(MT):
            if Aoff(b) >= 65536:
                a("ds_read_b128 %s, %s offset:%d", vr(fX[sset][mt], 4), vr(vaA2[mt][kap]), Aoff(b) - 65536); n += 1
            else:
                a("ds_read_b128 %s, %s offset:%d", vr(fX[sset][mt], 4), vr(vaA[mt][kap]), Aoff(b)); n += 1
        for nt in range(NT):
            off = b * c.bbytes + kap * 16 * RB
            a("ds_read_b64_tr_b16 %s, %s offset:%d", vr(fW[sset][nt], 2), vr(vaB[nt]), off)
            a("ds_read_b64_tr_b16 %s, %s offset:%d", vr(fW[sset][nt] + 2, 2), vr(vaB[nt]), off + 4 * RB); n += 2
        return n
    per = c.nAw + c.nBw
    LA = c.nbuf - 1
    for st in range(min(LA, c.nst)): issue_stage(st)
    for st in range(c.nst):
        a("s_waitcnt vmcnt(%d)", per * min(LA - 1, c.nst - 1 - st))
        a("s_barrier")
        if st + LA < c.nst: issue_stage(st + LA)
        n = load_frags(st, 0, 0)
        for kap in range(KS):
            if kap + 1 < KS:
                n2 = load_frags(st, kap + 1, (kap + 1) % 2)
                a("s_waitcnt lgkmcnt(%d)", n2)
            else:
                a("s_waitcnt lgkmcnt(0)")
            sset = kap % 2
            for nt in range(NT):
                for mt in range(MT):
                    if DBG_NOMFMA: continue
                    a("v_mfma_f32_32x32x16_bf16 %s, %s, %s, %s", vr(acc[nt][mt], 16), vr(fW[sset][nt], 4), vr(fX[sset][mt], 4), vr(acc[nt][mt], 16))
    a("s_nop 15"); a("s_nop 3")
    return dict(acc=acc, vlane=vlane, s_wm=s_wm, s_wn=s_wn, tmp=[vt0, vt1, vt2])

def tile_decode(a, wg_sreg, tilesN, s_tm, s_tn, s_tmp):
    a("s_lshr_b32 %s, %s, 3", sr(s_tmp), sr(wg_sreg))
    a("s_cmp_ge_u32 %s, %d", sr(s_tmp), tilesN)
    a("s_cselect_b32 %s, 1, 0", sr(s_tm))
    a("s_mul_i32 %s, %s, %d", sr(s_tn), sr(s_tm), tilesN)
    a("s_sub_u32 %s, %s, %s", sr(s_tn), sr(s_tmp), sr(s_tn))
    a("s_and_b32 %s, %s, 7", sr(s_tmp), sr(wg_sreg))
    a("s_lshl_b32 %s, %s, 1", sr(s_tmp), sr(s_tmp))
    a("s_add_u32 %s, %s, %s", sr(s_tm), sr(s_tm), sr(s_tmp))

def bf16_round_pair(a, vd, v0_, v1_):
    a("v_cvt_pk_bf16_f32 %s, %s, %s", vr(vd), vr(v0_), vr(v1_))

def emit_silu(a, v, t0, t1):
    for x in v:
        a("v_mul_f32 %s, %s, %s", vr(t0), hexf(-1.4426950408889634), vr(x))
        a("v_exp_f32 %s, %s", vr(t0), vr(t0))
        a("s_nop 0")
        a("v_add_f32 %s, 1.0, %s", vr(t0), vr(t0))
        a("v_rcp_f32 %s, %s", vr(t0), vr(t0))
        a("s_nop 0")
        a("v_mul_f32 %s, %s, %s", vr(x), vr(x), vr(t0))

def gen_gemm1_body(a, wg_sreg=2, BK=64, nbuf=3):
    c = GemmCfg(2048, 1728, 640, 128, 128, BK, 640, 1728, nbuf)
    R = Regs(1, 256); S = Regs(16, 100)
    srdA, srdB, srdO = 4, 8, 12
    sp = S.alloc(2, 2)
    a("s_load_dwordx2 %s, s[0:1], %d", sr(sp, 2), KARG['u'])
    sp2 = S.alloc(2, 2)
    a("s_load_dwordx2 %s, s[0:1], %d", sr(sp2, 2), KARG['w1'])
    sp3 = S.alloc(2, 2)
    a("s_load_dwordx2 %s, s[0:1], %d", sr(sp3, 2), KARG['ws'])
    a("s_waitcnt lgkmcnt(0)")
    srd(a, srdA, sr(sp), sr(sp + 1), 2048 * 640 * 2)
    srd(a, srdB, sr(sp2), sr(sp2 + 1), 640 * 1728 * 2)
    srd(a, srdO, sr(sp3), sr(sp3 + 1), 2048 * 1728 * 2)
    s_tm = S.alloc(); s_tn = S.alloc(); s_row0 = S.alloc(); s_col0 = S.alloc(); s_wave = S.alloc()
    tilesN = c.tilesN
    tile_decode(a, wg_sreg, tilesN, s_tm, s_tn, s_row0)
    a("s_lshl_b32 %s, %s, 7", sr(s_row0), sr(s_tm))
    a("s_lshl_b32 %s, %s, 7", sr(s_col0), sr(s_tn))
    r = emit_gemm_mainloop(a, c, R, S, srdA, srdB, s_row0, s_col0, s_wave)
    acc, vlane = r['acc'], r['vlane']
    s_t = S.alloc()
    a("s_lshl_b32 %s, %s, 6", sr(s_t), sr(r['s_wn']))
    a("s_add_u32 %s, %s, %s", sr(s_t), sr(s_t), sr(s_col0))
    Lskip = a.newlabel("g1skip")
    a("s_cmp_ge_u32 %s, %d", sr(s_t), c.N)
    a("s_cbranch_scc1 %s", Lskip)
    t0, t1, t2 = r['tmp']
    voff = R.alloc()
    a("v_and_b32 %s, 31, %s", vr(t0), vr(vlane))
    a("s_lshl_b32 %s, %s, 6", sr(s_tm), sr(r['s_wm']))
    a("s_add_u32 %s, %s, %s", sr(s_tm), sr(s_tm), sr(s_row0))
    a("v_add_u32 %s, %s, %s", vr(t0), sr(s_tm), vr(t0))
    a("s_mov_b32 %s, %d", sr(s_tn), 1728 * 2)
    a("v_mul_lo_u32 %s, %s, %s", vr(voff), vr(t0), sr(s_tn))
    a("v_lshrrev_b32 %s, 5, %s", vr(t1), vr(vlane))
    a("v_lshlrev_b32 %s, 3, %s", vr(t1), vr(t1))
    a("s_lshl_b32 %s, %s, 1", sr(s_t), sr(s_t))
    a("v_add3_u32 %s, %s, %s, %s", vr(voff), vr(voff), vr(t1), sr(s_t))
    pk = R.alloc(2, 2)
    voffs = [voff] + [R.alloc() for _ in range(c.MT - 1)]
    for mt in range(1, c.MT):
        a("v_add_u32 %s, 0x%x, %s", vr(voffs[mt]), mt * 32 * 1728 * 2, vr(voff))
    for nt in range(c.NT):
        for mt in range(c.MT):
            for Q in range(4):
                regs = [acc[nt][mt] + 4 * Q + e for e in range(4)]
                bf16_round_pair(a, pk, regs[0], regs[1]); bf16_round_pair(a, pk + 1, regs[2], regs[3])
                a("v_lshlrev_b32 %s, 16, %s", vr(regs[0]), vr(pk)); a("v_and_b32 %s, 0xffff0000, %s", vr(regs[1]), vr(pk))
                a("v_lshlrev_b32 %s, 16, %s", vr(regs[2]), vr(pk + 1)); a("v_and_b32 %s, 0xffff0000, %s", vr(regs[3]), vr(pk + 1))
                if not os.environ.get("NOSILU"): emit_silu(a, regs, t0, t1)
                bf16_round_pair(a, pk, regs[0], regs[1]); bf16_round_pair(a, pk + 1, regs[2], regs[3])
                if not os.environ.get("NOSTORE"): a("buffer_store_dwordx2 %s, %s, %s, 0 offen offset:%d", vr(pk, 2), vr(voffs[mt]), sr(srdO, 4), (nt * 32 + 8 * Q) * 2)
    a.label(Lskip)
    return c, R.hi

def gen_gemm2_body(a, wg_sreg=2, BK=64, nbuf=3):
    c = GemmCfg(2048, 640, 1728, 128, 64, BK, 1728, 640, nbuf)
    R = Regs(1, 256); S = Regs(16, 100)
    srdA, srdB, srdO, srdW = 4, 8, 12, S.alloc(4, 4)
    sp = S.alloc(2, 2)
    a("s_load_dwordx2 %s, s[0:1], %d", sr(sp, 2), KARG['ws'])
    sp2 = S.alloc(2, 2)
    a("s_load_dwordx2 %s, s[0:1], %d", sr(sp2, 2), KARG['w2'])
    sp3 = S.alloc(2, 2)
    a("s_load_dwordx2 %s, s[0:1], %d", sr(sp3, 2), KARG['out'])
    a("s_waitcnt lgkmcnt(0)")
    srd(a, srdA, sr(sp), sr(sp + 1), 2048 * 1728 * 2)
    srd(a, srdB, sr(sp2), sr(sp2 + 1), 1728 * 640 * 2)
    srd(a, srdO, sr(sp3), sr(sp3 + 1), 2048 * 640 * 2)
    srd(a, srdW, sr(sp), sr(sp + 1), WS_G + 2048 * 4)
    s_tm = S.alloc(); s_tn = S.alloc(); s_row0 = S.alloc(); s_col0 = S.alloc(); s_wave = S.alloc()
    tilesN = c.tilesN
    tile_decode(a, wg_sreg, tilesN, s_tm, s_tn, s_row0)
    a("s_lshl_b32 %s, %s, 7", sr(s_row0), sr(s_tm))
    a("s_lshl_b32 %s, %s, 6", sr(s_col0), sr(s_tn))
    r = emit_gemm_mainloop(a, c, R, S, srdA, srdB, s_row0, s_col0, s_wave)
    acc, vlane = r['acc'], r['vlane']
    t0, t1, t2 = r['tmp']
    PITCH = 272
    a("s_barrier")
    vtid = R.alloc(); va = R.alloc(); vl = R.alloc(); tmp4 = R.alloc(4, 4)
    for j in range(4):
        a("v_add_u32 %s, %d, v0", vr(vtid), j * 256)
        a("v_lshrrev_b32 %s, 4, %s", vr(va), vr(vtid))
        a("v_and_b32 %s, 15, %s", vr(vl), vr(vtid))
        a("v_add_u32 %s, %s, %s", vr(t0), sr(s_col0), vr(va))
        a("v_lshlrev_b32 %s, 12, %s", vr(t0), vr(t0))
        a("v_lshl_add_u32 %s, %s, 4, %s", vr(t0), vr(vl), vr(t0))
        a("s_lshl_b32 %s, %s, 1", sr(s_tm), sr(s_row0))
        a("s_add_u32 %s, %s, 0x%x", sr(s_tm), sr(s_tm), WS_AT)
        a("buffer_load_dwordx4 %s, %s, %s, %s offen", vr(tmp4, 4), vr(t0), sr(srdW, 4), sr(s_tm))
        a("s_mov_b32 %s, %d", sr(s_tn), PITCH)
        a("v_mul_lo_u32 %s, %s, %s", vr(t1), vr(va), sr(s_tn))
        a("v_lshl_add_u32 %s, %s, 4, %s", vr(t1), vr(vl), vr(t1))
        a("s_waitcnt vmcnt(0)")
        a("ds_write_b128 %s, %s", vr(t1), vr(tmp4, 4))
    a("s_waitcnt lgkmcnt(0)")
    a("s_barrier")
    vat = R.alloc()
    a("v_lshrrev_b32 %s, 5, %s", vr(t0), vr(vlane)); a("v_lshlrev_b32 %s, 2, %s", vr(t0), vr(t0))
    a("v_lshrrev_b32 %s, 2, %s", vr(t1), vr(vlane)); a("v_and_b32 %s, 3, %s", vr(t1), vr(t1))
    a("v_add_u32 %s, %s, %s", vr(t0), vr(t0), vr(t1))
    a("s_lshl_b32 %s, %s, 5", sr(s_tm), sr(r['s_wn']))
    a("v_add_u32 %s, %s, %s", vr(t0), sr(s_tm), vr(t0))
    a("s_mov_b32 %s, %d", sr(s_tn), PITCH)
    a("v_mul_lo_u32 %s, %s, %s", vr(vat), vr(t0), sr(s_tn))
    a("v_lshrrev_b32 %s, 4, %s", vr(t0), vr(vlane)); a("v_and_b32 %s, 1, %s", vr(t0), vr(t0)); a("v_lshlrev_b32 %s, 5, %s", vr(t0), vr(t0))
    a("v_and_b32 %s, 3, %s", vr(t1), vr(vlane)); a("v_lshl_add_u32 %s, %s, 3, %s", vr(t0), vr(t1), vr(t0))
    a("s_lshl_b32 %s, %s, 7", sr(s_tm), sr(r['s_wm']))
    a("v_add3_u32 %s, %s, %s, %s", vr(vat), vr(vat), vr(t0), sr(s_tm))
    voff = R.alloc(); vg = [R.alloc() for _ in range(c.MT)]
    a("v_and_b32 %s, 31, %s", vr(t0), vr(vlane))
    a("s_lshl_b32 %s, %s, 6", sr(s_tm), sr(r['s_wm']))
    a("s_add_u32 %s, %s, %s", sr(s_tm), sr(s_tm), sr(s_row0))
    a("v_add_u32 %s, %s, %s", vr(t0), sr(s_tm), vr(t0))
    a("s_mov_b32 %s, 0x%x", sr(s_tm), WS_G)
    for mt in range(c.MT):
        a("v_lshlrev_b32 %s, 2, %s", vr(t1), vr(t0))
        a("buffer_load_dword %s, %s, %s, %s offen offset:%d", vr(vg[mt]), vr(t1), sr(srdW, 4), sr(s_tm), mt * 128)
    a("v_mul_u32_u24 %s, %d, %s", vr(voff), 640 * 2, vr(t0))
    a("v_lshrrev_b32 %s, 5, %s", vr(t1), vr(vlane)); a("v_lshlrev_b32 %s, 3, %s", vr(t1), vr(t1))
    a("s_lshl_b32 %s, %s, 6", sr(s_tn), sr(r['s_wn']))
    a("s_lshl_b32 %s, %s, 1", sr(s_tm), sr(s_col0))
    a("s_add_u32 %s, %s, %s", sr(s_tm), sr(s_tm), sr(s_tn))
    a("v_add3_u32 %s, %s, %s, %s", vr(voff), vr(voff), vr(t1), sr(s_tm))
    av = R.alloc(8, 4); pk = R.alloc(2, 2); w = R.alloc(4); g1 = R.alloc()
    a("s_waitcnt vmcnt(0)")
    for mt in range(c.MT):
        for Q in range(4):
            a("ds_read_b64_tr_b16 %s, %s offset:%d", vr(av + 2 * (Q % 4), 2), vr(vat), Q * 8 * PITCH + mt * 64)
        a("v_sub_f32 %s, 1.0, %s", vr(g1), vr(vg[mt]))
        a("v_cvt_pk_bf16_f32 %s, %s, %s", vr(g1), vr(g1), vr(g1))
        a("v_lshlrev_b32 %s, 16, %s", vr(g1), vr(g1))
        a("s_waitcnt lgkmcnt(0)")
        for Q in range(4):
            regs = [acc[0][mt] + 4 * Q + e for e in range(4)]
            bf16_round_pair(a, pk, regs[0], regs[1]); bf16_round_pair(a, pk + 1, regs[2], regs[3])
            a("v_lshlrev_b32 %s, 16, %s", vr(regs[0]), vr(pk)); a("v_and_b32 %s, 0xffff0000, %s", vr(regs[1]), vr(pk))
            a("v_lshlrev_b32 %s, 16, %s", vr(regs[2]), vr(pk + 1)); a("v_and_b32 %s, 0xffff0000, %s", vr(regs[3]), vr(pk + 1))
            a("v_lshlrev_b32 %s, 16, %s", vr(w), vr(av + 2 * Q)); a("v_and_b32 %s, 0xffff0000, %s", vr(w + 1), vr(av + 2 * Q))
            a("v_lshlrev_b32 %s, 16, %s", vr(w + 2), vr(av + 2 * Q + 1)); a("v_and_b32 %s, 0xffff0000, %s", vr(w + 3), vr(av + 2 * Q + 1))
            for e in range(4):
                a("v_mul_f32 %s, %s, %s", vr(w + e), vr(vg[mt]), vr(w + e))
                a("v_mul_f32 %s, %s, %s", vr(regs[e]), vr(g1), vr(regs[e]))
            bf16_round_pair(a, pk, w, w + 1); bf16_round_pair(a, pk + 1, w + 2, w + 3)
            a("v_lshlrev_b32 %s, 16, %s", vr(w), vr(pk)); a("v_and_b32 %s, 0xffff0000, %s", vr(w + 1), vr(pk))
            a("v_lshlrev_b32 %s, 16, %s", vr(w + 2), vr(pk + 1)); a("v_and_b32 %s, 0xffff0000, %s", vr(w + 3), vr(pk + 1))
            bf16_round_pair(a, pk, regs[0], regs[1]); bf16_round_pair(a, pk + 1, regs[2], regs[3])
            a("v_lshlrev_b32 %s, 16, %s", vr(regs[0]), vr(pk)); a("v_and_b32 %s, 0xffff0000, %s", vr(regs[1]), vr(pk))
            a("v_lshlrev_b32 %s, 16, %s", vr(regs[2]), vr(pk + 1)); a("v_and_b32 %s, 0xffff0000, %s", vr(regs[3]), vr(pk + 1))
            for e in range(4):
                a("v_add_f32 %s, %s, %s", vr(w + e), vr(w + e), vr(regs[e]))
            bf16_round_pair(a, pk, w, w + 1); bf16_round_pair(a, pk + 1, w + 2, w + 3)
            a("buffer_store_dwordx2 %s, %s, %s, 0 offen offset:%d", vr(pk, 2), vr(voff), sr(srdO, 4), 8 * Q * 2)
        if mt + 1 < c.MT:
            a("v_add_u32 %s, 0x%x, %s", vr(voff), 32 * 640 * 2, vr(voff))
    return c, R.hi

def gen_gate_body(a, wg_sreg, nrows_per_wave=1):
    R = Regs(1, 64); S = Regs(16, 100)
    srdX, srdG, srdW = 4, 8, 12
    sp = S.alloc(2, 2); sp2 = S.alloc(2, 2); sp3 = S.alloc(2, 2)
    a("s_load_dwordx2 %s, s[0:1], %d", sr(sp, 2), KARG['u'])
    a("s_load_dwordx2 %s, s[0:1], %d", sr(sp2, 2), KARG['gw'])
    a("s_load_dwordx2 %s, s[0:1], %d", sr(sp3, 2), KARG['ws'])
    a("s_waitcnt lgkmcnt(0)")
    srd(a, srdX, sr(sp), sr(sp + 1), 2048 * 640 * 2)
    srd(a, srdG, sr(sp2), sr(sp2 + 1), 640 * 2)
    srd(a, srdW, sr(sp3), sr(sp3 + 1), WS_G + 2048 * 4)
    vl = R.alloc(); vw = R.alloc(); vo = R.alloc(); t = R.alloc(4)
    a("v_and_b32 %s, 63, v0", vr(vl))
    a("v_lshrrev_b32 %s, 6, v0", vr(vw))
    s_r = S.alloc()
    a("s_lshl_b32 %s, %s, 2", sr(s_r), sr(wg_sreg))
    a("v_add_u32 %s, %s, %s", vr(vw), sr(s_r), vr(vw))
    a("v_mul_u32_u24 %s, %d, %s", vr(vo), 1280, vr(vw))
    a("v_lshl_add_u32 %s, %s, 2, %s", vr(vo), vr(vl), vr(vo))
    a("v_lshlrev_b32 %s, 2, %s", vr(t), vr(vl))
    xs = R.alloc(5); gs = R.alloc(5)
    for j in range(5):
        a("buffer_load_dword %s, %s, %s, 0 offen offset:%d", vr(xs + j), vr(vo), sr(srdX, 4), j * 256)
        a("buffer_load_dword %s, %s, %s, 0 offen offset:%d", vr(gs + j), vr(t), sr(srdG, 4), j * 256)
    acc = R.alloc()
    a("v_mov_b32 %s, 0", vr(acc))
    a("s_waitcnt vmcnt(0)")
    for j in range(5):
        a("v_lshlrev_b32 %s, 16, %s", vr(t), vr(xs + j)); a("v_lshlrev_b32 %s, 16, %s", vr(t + 1), vr(gs + j))
        a("v_and_b32 %s, 0xffff0000, %s", vr(t + 2), vr(xs + j)); a("v_and_b32 %s, 0xffff0000, %s", vr(t + 3), vr(gs + j))
        a("v_mul_f32 %s, %s, %s", vr(t), vr(t), vr(t + 1)); a("v_mul_f32 %s, %s, %s", vr(t + 2), vr(t + 2), vr(t + 3))
        a("v_cvt_pk_bf16_f32 %s, %s, %s", vr(t), vr(t), vr(t + 2))
        a("v_lshlrev_b32 %s, 16, %s", vr(t + 1), vr(t)); a("v_and_b32 %s, 0xffff0000, %s", vr(t + 2), vr(t))
        a("v_add_f32 %s, %s, %s", vr(acc), vr(acc), vr(t + 1)); a("v_add_f32 %s, %s, %s", vr(acc), vr(acc), vr(t + 2))
    for off in (0x041F, 0x081F, 0x101F, 0x201F, 0x401F):
        a("ds_swizzle_b32 %s, %s offset:0x%x", vr(t), vr(acc), off)
        a("s_waitcnt lgkmcnt(0)")
        a("v_add_f32 %s, %s, %s", vr(acc), vr(acc), vr(t))
    s_a = S.alloc(); s_b = S.alloc()
    a("s_nop 1")
    a("v_readlane_b32 %s, %s, 0", sr(s_a), vr(acc))
    a("v_readlane_b32 %s, %s, 32", sr(s_b), vr(acc))
    a("s_nop 3")
    a("v_mov_b32 %s, %s", vr(t), sr(s_a))
    a("v_add_f32 %s, %s, %s", vr(t), sr(s_b), vr(t))
    a("v_cvt_pk_bf16_f32 %s, %s, %s", vr(t), vr(t), vr(t)); a("v_lshlrev_b32 %s, 16, %s", vr(t), vr(t))
    a("v_mul_f32 %s, %s, %s", vr(t), hexf(-1.4426950408889634), vr(t))
    a("v_exp_f32 %s, %s", vr(t), vr(t)); a("s_nop 0")
    a("v_add_f32 %s, 1.0, %s", vr(t), vr(t))
    a("v_rcp_f32 %s, %s", vr(t), vr(t)); a("s_nop 0")
    a("v_cvt_pk_bf16_f32 %s, %s, %s", vr(t), vr(t), vr(t)); a("v_lshlrev_b32 %s, 16, %s", vr(t), vr(t))
    a("v_lshlrev_b32 %s, 2, %s", vr(vw), vr(vw))
    a("v_cmp_eq_u32 vcc, 0, %s", vr(vl))
    s_e = S.alloc(2, 2)
    a("s_and_saveexec_b64 %s, vcc", sr(s_e, 2))
    a("s_mov_b32 %s, 0x%x", sr(s_a), WS_G)
    a("buffer_store_dword %s, %s, %s, %s offen", vr(t), vr(vw), sr(srdW, 4), sr(s_a))
    a("s_mov_b64 exec, %s", sr(s_e, 2))
    return R.hi
```

```python
import sys, os
from asmlib import *
from gemm import *
from conv import *
def build(path):
    G1BK = int(os.environ.get("G1BK", 32)); G1NB = int(os.environ.get("G1NB", 4)); G2NB = int(os.environ.get("G2NB", 6))
    kernels = []
    ac = Asm(); hc = gen_conv_body(ac, 2)
    a1 = Asm(); c1, h1 = gen_gemm1_body(a1, 2, G1BK, G1NB)
    ag = Asm(); hg = gen_gate_body(ag, 2)
    n1 = c1.tilesM * c1.tilesN
    m = Asm()
    m("s_cmp_lt_u32 s2, %d", n1)
    m("s_cbranch_scc1 L_k1_gemm1")
    m("s_sub_u32 s2, s2, %d", n1)
    m("s_cmp_lt_u32 s2, 640")
    m("s_cbranch_scc1 L_k1_conv")
    m("s_sub_u32 s2, s2, 640")
    m.lines += ag.lines
    m("s_endpgm")
    m.label("L_k1_conv")
    m("s_and_b32 s3, s2, 7")
    m("s_mul_i32 s3, s3, 80")
    m("s_lshr_b32 s2, s2, 3")
    m("s_add_u32 s2, s2, s3")
    m.lines += ac.lines
    m("s_endpgm")
    m.label("L_k1_gemm1")
    m.lines += a1.lines
    kernels.append(("k1_kernel", n1 + 640 + 512, max(CONV_LDS, c1.lds), m, max(hc, h1, hg)))
    a = Asm(); c2, hi = gen_gemm2_body(a, 2, 64, G2NB)
    kernels.append(("gemm2_kernel", c2.tilesM * c2.tilesN, max(c2.lds, 64 * 272), a, hi))
    out = ""
    for (n, g, lds, a, hi) in kernels:
        out += "; @launch kernel=%s grid=(%d,1,1) block=(256,1,1) lds=%d\n" % (n, g, lds)
    out += '.amdgcn_target "amdgcn-amd-amdhsa--gfx950"\n.text\n'
    for (n, g, lds, a, hi) in kernels:
        out += kernel_header(n)
        out += "    s_cmp_ge_u32 s2, %d\n    s_cbranch_scc1 L_end_%s\n" % (g, n)
        out += a.text() + "L_end_%s:\n    s_endpgm\n" % n
    out += '.section .rodata,"a"\n'
    for (n, g, lds, a, hi) in kernels:
        out += ".p2align 6\n" + kernel_desc(n, hi)
        print(n, "grid", g, "lds", lds, "vgpr", hi)
    open(path, "w").write(out)
if __name__ == "__main__":
    build(sys.argv[1] if len(sys.argv) > 1 else "full.s")
```

```python
from asmlib import *
from gemm import srd, KARG, WS_AT, WS_G
import math

KTB = 0
KPITCH = 144
UCB = 9216
UCP = 4240 + 16
PKB = UCB + 4 * UCP
PKS = 648 * 4
KDB = PKB + 4 * PKS
REDB = PKB

LOG2E = 1.4426950408889634
INV2PI = 0.15915494309189535

def cexp(a, dr, di, vlr, vw, p_sreg_or_imm, t):
    a("v_mul_f32 %s, %s, %s", vr(t), p_sreg_or_imm, vr(vlr))
    a("v_mul_f32 %s, %s, %s", vr(t + 1), p_sreg_or_imm, vr(vw))
    a("v_exp_f32 %s, %s", vr(t), vr(t))
    a("v_fract_f32 %s, %s", vr(t + 1), vr(t + 1))
    a("v_cos_f32 %s, %s", vr(t + 2), vr(t + 1))
    a("v_sin_f32 %s, %s", vr(t + 1), vr(t + 1))
    a("s_nop 0")
    a("v_mul_f32 %s, %s, %s", vr(dr), vr(t), vr(t + 2))
    a("v_mul_f32 %s, %s, %s", vr(di), vr(t), vr(t + 1))

def csq(a, dr, di, xr, xi, t):
    a("v_mul_f32 %s, %s, %s", vr(t), vr(xi), vr(xi))
    a("v_add_f32 %s, %s, %s", vr(t + 1), vr(xr), vr(xr))
    a("v_fma_f32 %s, %s, %s, -%s", vr(dr), vr(xr), vr(xr), vr(t))
    a("v_mul_f32 %s, %s, %s", vr(di), vr(t + 1), vr(xi))

def cmul(a, dr, di, ar, ai, br, bi):
    a("v_mul_f32 %s, %s, %s", vr(dr), vr(ar), vr(br))
    a("v_mul_f32 %s, %s, %s", vr(di), vr(ar), vr(bi))
    a("v_fma_f32 %s, -%s, %s, %s", vr(dr), vr(ai), vr(bi), vr(dr))
    a("v_fma_f32 %s, %s, %s, %s", vr(di), vr(ai), vr(br), vr(di))

def split_pair(a, hi, lo, x0, x1, t):
    a("v_cvt_pk_bf16_f32 %s, %s, %s", vr(hi), vr(x0), vr(x1))
    a("v_lshlrev_b32 %s, 16, %s", vr(t), vr(hi))
    a("v_and_b32 %s, 0xffff0000, %s", vr(t + 1), vr(hi))
    a("v_sub_f32 %s, %s, %s", vr(t), vr(x0), vr(t))
    a("v_sub_f32 %s, %s, %s", vr(t + 1), vr(x1), vr(t + 1))
    a("v_cvt_pk_bf16_f32 %s, %s, %s", vr(lo), vr(t), vr(t + 1))


KDB = PKB
CNB = KTB
REDB = 0
CH_LDS = PKB + 4 * PKS
CONV_LDS = 2 * CH_LDS

def pk_csq(a, d, x):
    a("v_pk_mul_f32 %s, %s, %s op_sel_hi:[0,1]", vr(d, 2), vr(x, 2), vr(x, 2))
    a("v_pk_fma_f32 %s, %s, %s, %s op_sel:[1,1,0] op_sel_hi:[0,1,1] neg_lo:[1,0,0]", vr(d, 2), vr(x, 2), vr(x, 2), vr(d, 2))
def pk_cmul(a, d, x, y):
    a("v_pk_mul_f32 %s, %s, %s op_sel_hi:[0,1]", vr(d, 2), vr(x, 2), vr(y, 2))
    a("v_pk_fma_f32 %s, %s, %s, %s op_sel:[1,1,0] op_sel_hi:[1,0,1] neg_lo:[1,0,0]", vr(d, 2), vr(x, 2), vr(y, 2), vr(d, 2))
def split2(a, hi, lo, x, t, negim=False):
    n = "-" if negim else ""
    a("v_cvt_pk_bf16_f32 %s, %s, %s%s", vr(hi), vr(x), n, vr(x + 1))
    a("v_lshlrev_b32 %s, 16, %s", vr(t), vr(hi))
    a("v_and_b32 %s, 0xffff0000, %s", vr(t + 1), vr(hi))
    a("v_sub_f32 %s, %s, %s", vr(t), vr(x), vr(t))
    a("v_sub_f32 %s, %s%s, %s", vr(t + 1), n, vr(x + 1), vr(t + 1))
    a("v_cvt_pk_bf16_f32 %s, %s, %s", vr(lo), vr(t), vr(t + 1))

import os
TS = os.environ.get("TSTAMP")
_ts = [0]
def stamp(a):
    if not TS: return
    i = _ts[0]; _ts[0] += 1
    a("s_memtime s[%d:%d]", 80 + 2 * i, 81 + 2 * i)

def gen_conv_body(a, wg_sreg):
    R = Regs(1, 256); S = Regs(16, 80)
    stamp(a)
    sU, sP0, sP1, sW = 4, 8, 12, S.alloc(4, 4)
    sP2 = S.alloc(4, 4); sP3 = S.alloc(4, 4); sP4 = S.alloc(4, 4); sP5 = S.alloc(4, 4)
    ptr = S.alloc(16, 4)
    a("s_load_dwordx16 %s, s[0:1], 0", sr(ptr, 16))
    pws = S.alloc(2, 2)
    a("s_load_dwordx2 %s, s[0:1], %d", sr(pws, 2), KARG['ws'])
    a("s_waitcnt lgkmcnt(0)")
    srd(a, sU, sr(ptr), sr(ptr + 1), 2048 * 640 * 2)
    srd(a, sP0, sr(ptr + 2), sr(ptr + 3), 640 * 128 * 2)
    srd(a, sP1, sr(ptr + 4), sr(ptr + 5), 640 * 128 * 2)
    srd(a, sP2, sr(ptr + 6), sr(ptr + 7), 640 * 128 * 2)
    srd(a, sP3, sr(ptr + 8), sr(ptr + 9), 640 * 128 * 2)
    srd(a, sP4, sr(ptr + 10), sr(ptr + 11), 640 * 2)
    srd(a, sP5, sr(ptr + 12), sr(ptr + 13), 640 * 2)
    srd(a, sW, sr(pws), sr(pws + 1), WS_AT + 640 * 2048 * 2)
    s_d = S.alloc(); TID = R.alloc()
    vlane = R.alloc(); vt = R.alloc(8, 2)
    s_wave = S.alloc(); s_t0 = S.alloc(); s_t1 = S.alloc(); se = S.alloc(2, 2)
    s_base = S.alloc(); s_pair = S.alloc()
    a("v_and_b32 %s, 63, v0", vr(vlane))
    a("v_lshrrev_b32 %s, 6, v0", vr(vt)); a("s_nop 0")
    a("v_readfirstlane_b32 %s, %s", sr(s_wave), vr(vt)); a("s_nop 4")
    a("s_lshr_b32 %s, %s, 2", sr(s_base), sr(s_wave))
    a("s_and_b32 %s, %s, 3", sr(s_wave), sr(s_wave))
    a("s_lshl_b32 %s, %s, 1", sr(s_pair), sr(wg_sreg))
    a("s_add_u32 %s, %s, %s", sr(s_d), sr(s_pair), sr(s_base))
    a("s_mul_i32 %s, %s, %d", sr(s_base), sr(s_base), CH_LDS)
    a("v_and_b32 %s, 255, v0", vr(TID))
    vdsk = R.alloc(); vu = R.alloc(4); tt = R.alloc(4, 2); vua = R.alloc(); s_u = S.alloc()
    a("v_mul_u32_u24 %s, 1280, v0", vr(vua))
    a("s_lshl_b32 %s, %s, 1", sr(s_u), sr(s_pair))
    mk0 = R.mark()
    vp = R.alloc(4); vdt = R.alloc()
    a("v_and_b32 %s, 127, v0", vr(vt)); a("v_lshlrev_b32 %s, 1, %s", vr(vt), vr(vt))
    a("s_lshl_b32 %s, %s, 8", sr(s_t0), sr(s_d))
    for i, srdp in enumerate((sP0, sP1, sP2, sP3)):
        a("buffer_load_ushort %s, %s, %s, %s offen", vr(vp + i), vr(vt), sr(srdp, 4), sr(s_t0))
    a("v_mov_b32 %s, 0", vr(vt + 1))
    a("s_lshl_b32 %s, %s, 1", sr(s_t1), sr(s_d))
    a("buffer_load_ushort %s, %s, %s, %s offen", vr(vdt), vr(vt + 1), sr(sP4, 4), sr(s_t1))
    a("buffer_load_ushort %s, %s, %s, %s offen", vr(vdsk), vr(vt + 1), sr(sP5, 4), sr(s_t1))
    import os
    vuo = R.alloc() if False else None
    z4 = R.alloc(4, 4)
    for i in range(4): a("v_mov_b32 %s, 0", vr(z4 + i))
    a("v_cmp_gt_u32 vcc, 64, %s", vr(TID))
    a("s_and_saveexec_b64 %s, vcc", sr(se, 2))
    a("v_lshrrev_b32 %s, 4, %s", vr(vt + 1), vr(TID)); a("v_mul_u32_u24 %s, %d, %s", vr(vt + 1), UCP, vr(vt + 1))
    a("v_and_b32 %s, 15, %s", vr(vt + 2), vr(TID)); a("v_lshl_add_u32 %s, %s, 4, %s", vr(vt + 1), vr(vt + 2), vr(vt + 1))
    a("v_add_u32 %s, %s, %s", vr(vt + 1), sr(s_base), vr(vt + 1))
    a("ds_write_b128 %s, %s offset:%d", vr(vt + 1), vr(z4, 4), UCB)
    a("s_mov_b64 exec, %s", sr(se, 2))
    c = R.alloc(12, 4); z = R.alloc(2, 2)
    a("s_waitcnt vmcnt(0)")
    a("v_lshlrev_b32 %s, 16, %s", vr(vdsk), vr(vdsk))
    a("v_lshlrev_b32 %s, 16, %s", vr(vdt), vr(vdt))
    a("v_mul_f32 %s, %s, %s", vr(vdt), hexf(LOG2E), vr(vdt))
    a("v_exp_f32 %s, %s", vr(vdt), vr(vdt)); a("s_nop 0")
    a("v_cvt_pk_bf16_f32 %s, %s, %s", vr(vdt), vr(vdt), vr(vdt)); a("v_lshlrev_b32 %s, 16, %s", vr(vdt), vr(vdt))
    for i in range(4): a("v_lshlrev_b32 %s, 16, %s", vr(vp + i), vr(vp + i))
    a("v_mul_f32 %s, %s, %s", vr(c), hexf(LOG2E), vr(vp))
    a("v_exp_f32 %s, %s", vr(c), vr(c)); a("s_nop 0")
    a("v_cvt_pk_bf16_f32 %s, %s, %s", vr(c), vr(c), vr(c)); a("v_lshlrev_b32 %s, 16, %s", vr(c), vr(c))
    a("v_mul_f32 %s, %s, %s", vr(c), vr(c), vr(vdt)); a("v_mul_f32 %s, %s, %s", vr(c), hexf(-LOG2E), vr(c))
    a("v_mul_f32 %s, %s, %s", vr(c + 1), vr(vp + 1), vr(vdt)); a("v_mul_f32 %s, %s, %s", vr(c + 1), hexf(INV2PI), vr(c + 1))
    a("v_mul_f32 %s, %s, %s", vr(c + 2), vr(vp + 2), vr(vdt)); a("v_add_f32 %s, %s, %s", vr(c + 2), vr(c + 2), vr(c + 2))
    a("v_mul_f32 %s, %s, %s", vr(c + 3), vr(vp + 3), vr(vdt)); a("v_add_f32 %s, %s, %s", vr(c + 3), vr(c + 3), vr(c + 3))
    for j in range(1, 4):
        cexp(a, z, z + 1, c, c + 1, hexf(float(2 ** (7 + j))), tt)
        pk_cmul(a, c + 2 + 2 * j, c + 2, z)
    a("v_and_b32 %s, 127, v0", vr(vt)); a("v_mul_u32_u24 %s, 48, %s", vr(vt), vr(vt))
    a("v_add_u32 %s, %s, %s", vr(vt), sr(s_base), vr(vt))
    a("v_cmp_gt_u32 vcc, 128, %s", vr(TID))
    a("s_and_saveexec_b64 %s, vcc", sr(se, 2))
    a("ds_write_b128 %s, %s offset:%d", vr(vt), vr(c, 4), CNB)
    a("ds_write_b128 %s, %s offset:%d", vr(vt), vr(c + 4, 4), CNB + 16)
    a("ds_write_b64 %s, %s offset:%d", vr(vt), vr(c + 8, 2), CNB + 32)
    a("s_mov_b64 exec, %s", sr(se, 2))
    a("s_waitcnt lgkmcnt(0)")
    a("s_barrier")
    stamp(a)
    R.release(mk0)
    mk = R.mark()
    Xh = [R.alloc(4, 4) for j in range(4)]; Xl = [R.alloc(4, 4) for j in range(4)]
    Yh = [R.alloc(4, 4) for j in range(4)]; Yl = [R.alloc(4, 4) for j in range(4)]
    kd = R.alloc(16, 4)
    for q in range(16): a("v_mov_b32 %s, 0", vr(kd + q))
    vl16 = R.alloc(); pv = R.alloc(); vcn = R.alloc()
    a("v_and_b32 %s, 15, %s", vr(vl16), vr(vlane))
    a("v_cvt_f32_u32 %s, %s", vr(vl16), vr(vl16))
    a("v_mul_f32 %s, %s, %s", vr(pv), hexf(16.0), vr(vl16))
    a("v_lshrrev_b32 %s, 4, %s", vr(vcn), vr(vlane)); a("v_mul_u32_u24 %s, %d, %s", vr(vcn), 4 * 48, vr(vcn))
    a("s_mul_i32 %s, %s, %d", sr(s_t0), sr(s_wave), 32 * 48)
    a("s_add_u32 %s, %s, %s", sr(s_t0), sr(s_t0), sr(s_base))
    a("v_add_u32 %s, %s, %s", vr(vcn), sr(s_t0), vr(vcn))
    cc = [R.alloc(12, 4)] * 2
    w = R.alloc(2, 2); w2 = R.alloc(2, 2); x = R.alloc(2, 2)
    def ldc(m):
        off = CNB + ((m // 4) * 16 + (m % 4)) * 48
        b = cc[m % 2]
        a("ds_read_b128 %s, %s offset:%d", vr(b, 4), vr(vcn), off)
        a("ds_read_b128 %s, %s offset:%d", vr(b + 4, 4), vr(vcn), off + 16)
        a("ds_read_b64 %s, %s offset:%d", vr(b + 8, 2), vr(vcn), off + 32)
    import os
    for m in range(8 if not os.environ.get("NOKGEN") else 0):
        s_, i = divmod(m, 4)
        ldc(m)
        if m % 2 == 0 and not os.environ.get("NOU"):
            a("buffer_load_dword %s, %s, %s, %s offen", vr(vu + m // 2), vr(vua), sr(sU, 4), sr(s_u))
            a("s_add_u32 %s, %s, %d", sr(s_u), sr(s_u), 512 * 1280)
        a("s_waitcnt lgkmcnt(0)")
        cb = cc[m % 2]
        cexp(a, w, w + 1, cb, cb + 1, vr(vl16), tt)
        for j in range(4):
            split2(a, Yh[j] + i, Yl[j] + i, w, tt)
            if j < 3:
                pk_csq(a, w2, w); w, w2 = w2, w
        cexp(a, w, w + 1, cb, cb + 1, vr(pv), tt)
        for j in range(4):
            if j > 0:
                pk_csq(a, w2, w); w, w2 = w2, w
            pk_cmul(a, x, cb + 2 + 2 * j, w)
            split2(a, Xh[j] + i, Xl[j] + i, x, tt, negim=True)
        if i == 3:
            a("s_nop 1")
            for j in range(4):
                for (A_, B_) in ((Xh, Yh), (Xh, Yl), (Xl, Yh)):
                    a("v_mfma_f32_16x16x32_bf16 %s, %s, %s, %s", vr(kd + 4 * j, 4), vr(A_[j], 4), vr(B_[j], 4), vr(kd + 4 * j, 4))
    a("s_nop 7"); a("s_nop 1")
    stamp(a)
    a("s_waitcnt vmcnt(0)")
    a("v_lshlrev_b32 %s, 1, v0", vr(vt))
    for i in range(4):
        for r in range(4):
            a("ds_write_b16 %s, %s offset:%d", vr(vt), vr(vu + i), UCB + r * UCP + (i * 512 + r + 64) * 2)
            a("ds_write_b16_d16_hi %s, %s offset:%d", vr(vt), vr(vu + i), CH_LDS + UCB + r * UCP + (i * 512 + r + 64) * 2)
    basej = [0, 256, 384, 512]
    a("v_lshrrev_b32 %s, 4, %s", vr(vt), vr(vlane)); a("v_lshlrev_b32 %s, 6, %s", vr(vt), vr(vt))
    a("v_and_b32 %s, 15, %s", vr(vt + 1), vr(vlane)); a("v_add_u32 %s, %s, %s", vr(vt), vr(vt), vr(vt + 1))
    a("v_lshlrev_b32 %s, 2, %s", vr(vt), vr(vt))
    a("s_mul_i32 %s, %s, %d", sr(s_t0), sr(s_wave), PKS)
    a("s_add_u32 %s, %s, %s", sr(s_t0), sr(s_t0), sr(s_base))
    a("v_add_u32 %s, %s, %s", vr(vt), sr(s_t0), vr(vt))
    for r in range(4):
        a("ds_write_b32 %s, %s offset:%d", vr(vt), vr(kd + r), KDB + r * 64)
    a("v_cmp_gt_u32 vcc, 33, %s", vr(vlane))
    a("s_and_saveexec_b64 %s, vcc", sr(se, 2))
    a("ds_write_b32 %s, %s offset:%d", vr(vt), vr(kd + 12), KDB + basej[3] * 4)
    a("v_cmp_gt_u32 vcc, 32, %s", vr(vlane))
    a("s_and_b64 exec, exec, vcc")
    for j in range(1, 4):
        for r in range(4):
            if j == 3 and r == 0: continue
            a("ds_write_b32 %s, %s offset:%d", vr(vt), vr(kd + 4 * j + r), KDB + basej[j] * 4 + r * 64)
    a("s_mov_b64 exec, %s", sr(se, 2))
    a("s_waitcnt lgkmcnt(0)")
    a("s_barrier")
    R.release(mk)
    vs = R.alloc(); vt0 = R.alloc(); kv = R.alloc(32); pk4 = R.alloc(4, 4)
    z4 = R.alloc(4, 4)
    for i in range(4): a("v_mov_b32 %s, 0", vr(z4 + i))
    a("v_lshlrev_b32 %s, 4, %s", vr(vt), vr(TID)); a("v_add_u32 %s, %s, %s", vr(vt), sr(s_base), vr(vt))
    a("ds_write_b128 %s, %s offset:%d", vr(vt), vr(z4, 4), KTB)
    a("v_cmp_gt_u32 vcc, 32, %s", vr(TID))
    a("s_and_saveexec_b64 %s, vcc", sr(se, 2))
    a("ds_write_b128 %s, %s offset:%d", vr(vt), vr(z4, 4), KTB + 4096)
    a("s_mov_b64 exec, %s", sr(se, 2))
    a("v_lshlrev_b32 %s, 3, %s", vr(vt0), vr(TID))
    a("v_or_b32 %s, 1, %s", vr(vt), vr(vt0))
    a("v_ffbh_u32 %s, %s", vr(vs), vr(vt))
    a("v_sub_u32 %s, 24, %s", vr(vs), vr(vs))
    a("v_max_i32 %s, 0, %s", vr(vs), vr(vs))
    vhm = R.alloc(); vm1 = R.alloc()
    a("v_lshlrev_b32 %s, %s, 1", vr(vhm), vr(vs)); a("v_lshrrev_b32 %s, 1, %s", vr(vhm), vr(vhm))
    a("v_min_u32 %s, 1, %s", vr(vm1), vr(vs))
    a("v_sub_u32 %s, %s, %s", vr(vhm), vr(vhm), vr(vm1))
    for i in range(8):
        a("v_add_u32 %s, %d, %s", vr(vt), i, vr(vt0))
        a("v_lshrrev_b32 %s, %s, %s", vr(vt + 1), vr(vs), vr(vt))
        a("v_and_b32 %s, %s, %s", vr(vt + 1), vr(vm1), vr(vt + 1))
        a("v_add3_u32 %s, %s, %s, %s", vr(vt + 1), vr(vt + 1), vr(vhm), vr(vt))
        a("v_lshrrev_b32 %s, %s, %s", vr(vt + 1), vr(vs), vr(vt + 1))
        a("v_lshl_add_u32 %s, %s, 7, %s", vr(vt + 1), vr(vs), vr(vt + 1))
        a("v_lshl_add_u32 %s, %s, 2, %s", vr(vt + 1), vr(vt + 1), sr(s_base))
        for w_ in range(4):
            a("ds_read_b32 %s, %s offset:%d", vr(kv + 8 * w_ + i), vr(vt + 1), KDB + w_ * PKS)
    a("s_waitcnt lgkmcnt(0)")
    for i in range(8):
        a("v_add_f32 %s, %s, %s", vr(kv + i), vr(kv + i), vr(kv + 8 + i))
        a("v_add_f32 %s, %s, %s", vr(kv + 16 + i), vr(kv + 16 + i), vr(kv + 24 + i))
    for i in range(8):
        a("v_add_f32 %s, %s, %s", vr(kv + i), vr(kv + i), vr(kv + 16 + i))
    for i in range(4):
        a("v_cvt_pk_bf16_f32 %s, %s, %s", vr(pk4 + i), vr(kv + 2 * i), vr(kv + 2 * i + 1))
    a("v_lshrrev_b32 %s, 3, %s", vr(vt), vr(TID)); a("v_mul_u32_u24 %s, %d, %s", vr(vt), KPITCH, vr(vt))
    a("v_and_b32 %s, 7, %s", vr(vt + 1), vr(TID)); a("v_lshl_add_u32 %s, %s, 4, %s", vr(vt), vr(vt + 1), vr(vt))
    a("v_add_u32 %s, %s, %s", vr(vt), sr(s_base), vr(vt))
    a("ds_write_b128 %s, %s offset:%d", vr(vt), vr(pk4, 4), KTB + 32 * KPITCH)
    a("s_waitcnt lgkmcnt(0)")
    a("s_barrier")
    stamp(a)
    R.release(mk)
    vka = R.alloc(); vub = R.alloc()
    a("v_and_b32 %s, 31, %s", vr(vt), vr(vlane)); a("v_add_u32 %s, 25, %s", vr(vt), vr(vt))
    a("v_mul_u32_u24 %s, %d, %s", vr(vka), KPITCH, vr(vt))
    a("v_lshrrev_b32 %s, 5, %s", vr(vt), vr(vlane)); a("v_lshl_add_u32 %s, %s, 4, %s", vr(vka), vr(vt), vr(vka))
    a("s_mul_i32 %s, %s, %d", sr(s_t0), sr(s_wave), 8 * KPITCH)
    a("s_sub_u32 %s, %s, %s", sr(s_t0), sr(s_t0), sr(s_base))
    a("v_sub_u32 %s, %s, %s", vr(vka), vr(vka), sr(s_t0))
    a("v_lshrrev_b32 %s, 2, %s", vr(vt), vr(vlane)); a("v_and_b32 %s, 3, %s", vr(vt), vr(vt))
    a("v_mul_u32_u24 %s, %d, %s", vr(vub), UCP, vr(vt))
    a("v_lshrrev_b32 %s, 4, %s", vr(vt), vr(vlane)); a("v_and_b32 %s, 1, %s", vr(vt), vr(vt)); a("v_lshl_add_u32 %s, %s, 5, %s", vr(vub), vr(vt), vr(vub))
    a("v_lshrrev_b32 %s, 5, %s", vr(vt), vr(vlane)); a("v_lshlrev_b32 %s, 4, %s", vr(vt), vr(vt)); a("v_sub_u32 %s, %s, %s", vr(vub), vr(vub), vr(vt))
    a("v_and_b32 %s, 3, %s", vr(vt), vr(vlane)); a("v_lshl_add_u32 %s, %s, 3, %s", vr(vub), vr(vt), vr(vub))
    a("s_lshl_b32 %s, %s, 10", sr(s_t0), sr(s_wave))
    a("s_add_u32 %s, %s, %s", sr(s_t0), sr(s_t0), sr(s_base))
    a("v_add_u32 %s, %s, %s", vr(vub), sr(s_t0), vr(vub))
    acc = [R.alloc(16, 4) for _ in range(2)]
    for nu in range(2):
        for q in range(16): a("v_mov_b32 %s, 0", vr(acc[nu] + q))
    uu = R.alloc(4, 4)
    mkf = R.mark()
    fK = [R.alloc(4, 4) for _ in range(4)]
    fU = {}
    ufr = [R.alloc(4, 4) for _ in range(6)]
    for jj in range(8 if not os.environ.get("NOCONV") else 0):
        for kap in range(4):
            a("ds_read_b128 %s, %s offset:%d", vr(fK[kap], 4), vr(vka), KTB + (7 - jj) * KPITCH + 32 * kap)
        cs = sorted(set(32 * nu - 16 * kap for nu in range(2) for kap in range(4)))
        for ci, c in enumerate(cs):
            off = UCB + (64 * jj + c + 64) * 2
            a("ds_read_b64_tr_b16 %s, %s offset:%d", vr(ufr[ci], 2), vr(vub), off)
            a("ds_read_b64_tr_b16 %s, %s offset:%d", vr(ufr[ci] + 2, 2), vr(vub), off - 8)
        a("s_waitcnt lgkmcnt(0)")
        for kap in range(4):
            for nu in range(2):
                ci = cs.index(32 * nu - 16 * kap)
                a("v_mfma_f32_32x32x16_bf16 %s, %s, %s, %s", vr(acc[nu], 16), vr(fK[kap], 4), vr(ufr[ci], 4), vr(acc[nu], 16))
    a("s_nop 15"); a("s_nop 3")
    stamp(a)
    R.release(mkf)
    a("v_lshlrev_b32 %s, 4, %s", vr(vt), vr(TID)); a("v_add_u32 %s, %s, %s", vr(vt), sr(s_base), vr(vt))
    a("ds_read_b128 %s, %s offset:%d", vr(uu, 4), vr(vt), UCB + 64 * 2)
    a("s_waitcnt lgkmcnt(0)")
    a("s_barrier")
    a("v_lshrrev_b32 %s, 5, %s", vr(vt), vr(vlane)); a("v_lshlrev_b32 %s, 10, %s", vr(vt), vr(vt))
    a("v_and_b32 %s, 31, %s", vr(vt + 1), vr(vlane)); a("v_lshl_add_u32 %s, %s, 2, %s", vr(vt), vr(vt + 1), vr(vt))
    a("s_lshl_b32 %s, %s, 13", sr(s_t0), sr(s_wave))
    a("s_add_u32 %s, %s, %s", sr(s_t0), sr(s_t0), sr(s_base))
    a("v_add_u32 %s, %s, %s", vr(vt), sr(s_t0), vr(vt))
    for nu in range(2):
        for q in range(16):
            I = 8 * (q // 4) + (q % 4)
            a("ds_write_b32 %s, %s offset:%d", vr(vt), vr(acc[nu] + q), REDB + I * 256 + nu * 128)
    a("s_waitcnt lgkmcnt(0)")
    a("s_barrier")
    a("v_lshlrev_b32 %s, 5, %s", vr(vt), vr(TID)); a("v_add_u32 %s, %s, %s", vr(vt), sr(s_base), vr(vt))
    y = R.alloc(8, 4); yp = [R.alloc(8, 4) for _ in range(3)]
    a("ds_read_b128 %s, %s offset:%d", vr(y, 4), vr(vt), REDB); a("ds_read_b128 %s, %s offset:%d", vr(y + 4, 4), vr(vt), REDB + 16)
    for w_ in range(3):
        a("ds_read_b128 %s, %s offset:%d", vr(yp[w_], 4), vr(vt), REDB + 8192 * (w_ + 1)); a("ds_read_b128 %s, %s offset:%d", vr(yp[w_] + 4, 4), vr(vt), REDB + 8192 * (w_ + 1) + 16)
    a("s_waitcnt lgkmcnt(0)")
    for k in range(8):
        a("v_add_f32 %s, %s, %s", vr(y + k), vr(y + k), vr(yp[0] + k))
        a("v_add_f32 %s, %s, %s", vr(yp[1] + k), vr(yp[1] + k), vr(yp[2] + k))
    for k in range(8):
        a("v_add_f32 %s, %s, %s", vr(y + k), vr(y + k), vr(yp[1] + k))
    o4 = R.alloc(4, 4)
    for k in range(4):
        a("v_cvt_pk_bf16_f32 %s, %s, %s", vr(vt), vr(y + 2 * k), vr(y + 2 * k + 1))
        a("v_lshlrev_b32 %s, 16, %s", vr(y + 2 * k), vr(vt)); a("v_and_b32 %s, 0xffff0000, %s", vr(y + 2 * k + 1), vr(vt))
        a("v_lshlrev_b32 %s, 16, %s", vr(vt + 1), vr(uu + k)); a("v_and_b32 %s, 0xffff0000, %s", vr(vt + 2), vr(uu + k))
        a("v_mul_f32 %s, %s, %s", vr(vt + 1), vr(vdsk), vr(vt + 1)); a("v_mul_f32 %s, %s, %s", vr(vt + 2), vr(vdsk), vr(vt + 2))
        a("v_cvt_pk_bf16_f32 %s, %s, %s", vr(vt), vr(vt + 1), vr(vt + 2))
        a("v_lshlrev_b32 %s, 16, %s", vr(vt + 1), vr(vt)); a("v_and_b32 %s, 0xffff0000, %s", vr(vt + 2), vr(vt))
        a("v_add_f32 %s, %s, %s", vr(vt + 1), vr(vt + 1), vr(y + 2 * k)); a("v_add_f32 %s, %s, %s", vr(vt + 2), vr(vt + 2), vr(y + 2 * k + 1))
        a("v_cvt_pk_bf16_f32 %s, %s, %s", vr(o4 + k), vr(vt + 1), vr(vt + 2))
    a("v_lshlrev_b32 %s, 4, %s", vr(vt), vr(TID))
    a("s_lshl_b32 %s, %s, 12", sr(s_t0), sr(s_d)); a("s_add_u32 %s, %s, 0x%x", sr(s_t0), sr(s_t0), WS_AT)
    a("buffer_store_dwordx4 %s, %s, %s, %s offen", vr(o4, 4), vr(vt), sr(sW, 4), sr(s_t0))
    if TS:
        stamp(a)
        a("s_waitcnt lgkmcnt(0)")
        a("s_load_dwordx2 s[4:5], s[0:1], 96")
        a("s_waitcnt lgkmcnt(0)")
        a("s_mov_b32 s6, 256"); a("s_mov_b32 s7, 0x00020000")
        a("s_cmp_eq_u32 %s, %s", sr(s_d), TS)
        a("s_cbranch_scc0 L_ts_skip")
        a("v_cmp_eq_u32 vcc, 0, v0")
        a("s_and_saveexec_b64 %s, vcc", sr(se, 2))
        a("v_mov_b32 %s, 0", vr(vt))
        for i in range(_ts[0]):
            a("s_sub_u32 s%d, s%d, s80", 100, 80 + 2 * i)
            a("v_mov_b32 %s, s100", vr(vt + 1))
            a("buffer_store_dword %s, %s, s[4:7], 0 offen offset:%d", vr(vt + 1), vr(vt), 4 * i)
        a("s_mov_b64 exec, %s", sr(se, 2))
        a.label("L_ts_skip")
    return R.hi
```

```python
from asmlib import *

WS_H   = 0
WS_AT  = 8 << 20
WS_G   = 12 << 20

KARG = dict(u=0, lar=8, aim=16, cr=24, ci=32, ldt=40, dsk=48, bx=56, w1=64, w2=72, gw=80, out=88, dbg=96, ws=104)

def srd(a, s, base_lo, base_hi, size):
    a("s_mov_b32 %s, %s", sr(s), base_lo)
    a("s_mov_b32 %s, %s", sr(s+1), base_hi)
    a("s_mov_b32 %s, 0x%x", sr(s+2), size)
    a("s_mov_b32 %s, 0x00020000", sr(s+3))

def fA(row, BK):
    return ((row >> 1) & 7) if BK == 64 else ((row >> 2) & 3)
def fB(k, BN):
    if BN == 128: return (k & 3) << 2
    if BN == 64: return ((k >> 1) & 1) << 2
    raise ValueError
class GemmCfg:
    def __init__(s, M, N, K, BM, BN, BK, lda, ldb, nbuf=3, nw=4):
        s.M, s.N, s.K, s.BM, s.BN, s.BK, s.lda, s.ldb, s.nbuf = M, N, K, BM, BN, BK, lda, ldb, nbuf
        s.nw = nw
        s.MT = BM // (32 * (nw // 2)); s.NT = BN // 64
        s.KS = BK // 16
        s.nst = K // BK
        assert K % BK == 0
        s.abytes = BM * BK * 2; s.bbytes = BK * BN * 2
        s.nAw = s.abytes // 1024 // nw; s.nBw = s.bbytes // 1024 // nw
        s.tilesM = M // BM; s.tilesN = (N + BN - 1) // BN
        s.lds = nbuf * (s.abytes + s.bbytes)

import os
DBG_NOMFMA = os.environ.get("NOMFMA"); DBG_NODMA = os.environ.get("NODMA"); DBG_NOLDS = os.environ.get("NOLDS")
def emit_gemm_mainloop(a, c, R, S, srdA, srdB, s_row0, s_col0, s_wave, lds_base=0):
    MT, NT, KS, BK, BM, BN = c.MT, c.NT, c.KS, c.BK, c.BM, c.BN
    RA = BK * 2; RB = BN * 2
    chA = RA // 16; chB = RB // 16
    vlane = R.alloc(); vt0 = R.alloc(); vt1 = R.alloc(); vt2 = R.alloc()
    a("v_and_b32 %s, 63, v0", vr(vlane))
    a("v_lshrrev_b32 %s, 6, v0", vr(vt0)); a("s_nop 0")
    a("v_readfirstlane_b32 %s, %s", sr(s_wave), vr(vt0))
    a("s_nop 4")
    s_wm = S.alloc(); s_wn = S.alloc(); s_t0 = S.alloc(); s_t1 = S.alloc()
    a("s_lshr_b32 %s, %s, 1", sr(s_wm), sr(s_wave))
    a("s_and_b32 %s, %s, 1", sr(s_wn), sr(s_wave))
    vdA = [R.alloc() for _ in range(c.nAw)]
    vdB = [R.alloc() for _ in range(c.nBw)]
    lg = lambda x: x.bit_length() - 1
    for i in range(c.nAw):
        a("s_mul_i32 %s, %s, %d", sr(s_t0), sr(s_wave), c.nAw * 64)
        a("s_add_u32 %s, %s, %d", sr(s_t0), sr(s_t0), i * 64)
        a("v_add_u32 %s, %s, %s", vr(vt0), sr(s_t0), vr(vlane))
        a("v_lshrrev_b32 %s, %d, %s", vr(vt1), lg(chA), vr(vt0))
        a("v_and_b32 %s, %d, %s", vr(vt0), chA - 1, vr(vt0))
        if BK == 64:
            a("v_lshrrev_b32 %s, 1, %s", vr(vt2), vr(vt1)); a("v_and_b32 %s, 7, %s", vr(vt2), vr(vt2))
        else:
            a("v_lshrrev_b32 %s, 2, %s", vr(vt2), vr(vt1)); a("v_and_b32 %s, 3, %s", vr(vt2), vr(vt2))
        a("v_xor_b32 %s, %s, %s", vr(vt0), vr(vt0), vr(vt2))
        a("v_add_u32 %s, %s, %s", vr(vt1), sr(s_row0), vr(vt1))
        a("s_mov_b32 %s, %d", sr(s_t1), c.lda * 2)
        a("v_mul_lo_u32 %s, %s, %s", vr(vt1), vr(vt1), sr(s_t1))
        a("v_lshl_add_u32 %s, %s, 4, %s", vr(vdA[i]), vr(vt0), vr(vt1))
    for i in range(c.nBw):
        a("s_mul_i32 %s, %s, %d", sr(s_t0), sr(s_wave), c.nBw * 64)
        a("s_add_u32 %s, %s, %d", sr(s_t0), sr(s_t0), i * 64)
        a("v_add_u32 %s, %s, %s", vr(vt0), sr(s_t0), vr(vlane))
        a("v_lshrrev_b32 %s, %d, %s", vr(vt1), lg(chB), vr(vt0))
        a("v_and_b32 %s, %d, %s", vr(vt0), chB - 1, vr(vt0))
        if BN == 128:
            a("v_and_b32 %s, 3, %s", vr(vt2), vr(vt1)); a("v_lshlrev_b32 %s, 2, %s", vr(vt2), vr(vt2))
        else:
            a("v_lshrrev_b32 %s, 1, %s", vr(vt2), vr(vt1)); a("v_and_b32 %s, 1, %s", vr(vt2), vr(vt2)); a("v_lshlrev_b32 %s, 2, %s", vr(vt2), vr(vt2))
        a("v_xor_b32 %s, %s, %s", vr(vt0), vr(vt0), vr(vt2))
        a("s_mov_b32 %s, %d", sr(s_t1), c.ldb * 2)
        a("v_mul_lo_u32 %s, %s, %s", vr(vt1), vr(vt1), sr(s_t1))
        a("v_lshl_add_u32 %s, %s, 4, %s", vr(vt0), vr(vt0), vr(vt1))
        a("s_lshl_b32 %s, %s, 1", sr(s_t1), sr(s_col0))
        a("v_add_u32 %s, %s, %s", vr(vdB[i]), sr(s_t1), vr(vt0))
    Aoff = lambda b: lds_base + b * c.abytes
    Boff = lambda b: lds_base + c.nbuf * c.abytes + b * c.bbytes
    s_mA = S.alloc(); s_mB = S.alloc()
    a("s_mul_i32 %s, %s, %d", sr(s_mA), sr(s_wave), c.nAw * 1024)
    a("s_mul_i32 %s, %s, %d", sr(s_mB), sr(s_wave), c.nBw * 1024)
    s_soA = S.alloc(); s_soB = S.alloc()
    def issue_stage(st):
        if DBG_NODMA: return
        b = st % c.nbuf
        a("s_mov_b32 %s, %d", sr(s_soA), st * BK * 2)
        a("s_mov_b32 %s, %d", sr(s_soB), st * BK * c.ldb * 2)
        for i in range(c.nAw):
            a("s_add_u32 m0, %s, %d", sr(s_mA), Aoff(b) + i * 1024)
            a("s_nop 0")
            a("buffer_load_dwordx4 %s, %s, %s offen lds", vr(vdA[i]), sr(srdA, 4), sr(s_soA))
        for i in range(c.nBw):
            a("s_add_u32 m0, %s, %d", sr(s_mB), Boff(b) + i * 1024)
            a("s_nop 0")
            a("buffer_load_dwordx4 %s, %s, %s offen lds", vr(vdB[i]), sr(srdB, 4), sr(s_soB))
    vaA = [[R.alloc() for _ in range(KS)] for _ in range(MT)]
    a("v_and_b32 %s, 31, %s", vr(vt0), vr(vlane))
    a("v_lshrrev_b32 %s, 5, %s", vr(vt1), vr(vlane))
    for mt in range(MT):
        a("s_mul_i32 %s, %s, %d", sr(s_t0), sr(s_wm), MT * 32)
        a("s_add_u32 %s, %s, %d", sr(s_t0), sr(s_t0), mt * 32)
        a("v_add_u32 %s, %s, %s", vr(vt2), sr(s_t0), vr(vt0))
        vf = R.alloc()
        if BK == 64:
            a("v_lshrrev_b32 %s, 1, %s", vr(vf), vr(vt2)); a("v_and_b32 %s, 7, %s", vr(vf), vr(vf))
        else:
            a("v_lshrrev_b32 %s, 2, %s", vr(vf), vr(vt2)); a("v_and_b32 %s, 3, %s", vr(vf), vr(vf))
        for kap in range(KS):
            t = vaA[mt][kap]
            a("v_add_u32 %s, %d, %s", vr(t), 2 * kap, vr(vt1))
            a("v_xor_b32 %s, %s, %s", vr(t), vr(t), vr(vf))
            a("v_lshlrev_b32 %s, 4, %s", vr(t), vr(t))
            a("v_lshl_add_u32 %s, %s, %d, %s", vr(t), vr(vt2), lg(RA), vr(t))
        R.release(vf)
    vaA2 = None
    if Aoff(c.nbuf - 1) >= 65536:
        vaA2 = [[R.alloc() for _ in range(KS)] for _ in range(MT)]
        for mt in range(MT):
            for kap in range(KS):
                a("v_add_u32 %s, 0x10000, %s", vr(vaA2[mt][kap]), vr(vaA[mt][kap]))
    vaB = [R.alloc() for _ in range(NT)]
    vr_ = R.alloc(); vk = R.alloc()
    a("v_lshrrev_b32 %s, 2, %s", vr(vr_), vr(vlane)); a("v_and_b32 %s, 3, %s", vr(vr_), vr(vr_))
    a("v_lshrrev_b32 %s, 5, %s", vr(vk), vr(vlane)); a("v_lshl_add_u32 %s, %s, 3, %s", vr(vk), vr(vk), vr(vr_))
    for nt in range(NT):
        t = vaB[nt]
        a("v_lshrrev_b32 %s, 4, %s", vr(vt0), vr(vlane)); a("v_and_b32 %s, 1, %s", vr(vt0), vr(vt0)); a("v_lshlrev_b32 %s, 5, %s", vr(vt0), vr(vt0))
        a("v_and_b32 %s, 3, %s", vr(vt1), vr(vlane)); a("v_lshl_add_u32 %s, %s, 3, %s", vr(vt0), vr(vt1), vr(vt0))
        a("s_mul_i32 %s, %s, %d", sr(s_t0), sr(s_wn), BN)
        a("s_add_u32 %s, %s, %d", sr(s_t0), sr(s_t0), 64 * nt)
        a("v_add_u32 %s, %s, %s", vr(vt0), sr(s_t0), vr(vt0))
        if BN == 128:
            a("v_lshlrev_b32 %s, 6, %s", vr(vt1), vr(vr_))
        else:
            a("v_lshrrev_b32 %s, 1, %s", vr(vt1), vr(vr_)); a("v_lshlrev_b32 %s, 6, %s", vr(vt1), vr(vt1))
        a("v_xor_b32 %s, %s, %s", vr(vt0), vr(vt0), vr(vt1))
        a("v_lshl_add_u32 %s, %s, %d, %s", vr(t), vr(vk), lg(RB), vr(vt0))
        a("v_add_u32 %s, %d, %s", vr(t), Boff(0), vr(t))
    acc = [[R.alloc(16, 4) for _ in range(MT)] for _ in range(NT)]
    for nt in range(NT):
        for mt in range(MT):
            for r in range(16):
                a("v_mov_b32 %s, 0", vr(acc[nt][mt] + r))
    fX = [[R.alloc(4, 4) for _ in range(MT)] for _ in range(2)]
    fW = [[R.alloc(4, 4) for _ in range(NT)] for _ in range(2)]
    def load_frags(st, kap, sset):
        b = st % c.nbuf
        n = 0
        if DBG_NOLDS: return 0
        for mt in range(MT):
            if Aoff(b) >= 65536:
                a("ds_read_b128 %s, %s offset:%d", vr(fX[sset][mt], 4), vr(vaA2[mt][kap]), Aoff(b) - 65536); n += 1
            else:
                a("ds_read_b128 %s, %s offset:%d", vr(fX[sset][mt], 4), vr(vaA[mt][kap]), Aoff(b)); n += 1
        for nt in range(NT):
            off = b * c.bbytes + kap * 16 * RB
            a("ds_read_b64_tr_b16 %s, %s offset:%d", vr(fW[sset][nt], 2), vr(vaB[nt]), off)
            a("ds_read_b64_tr_b16 %s, %s offset:%d", vr(fW[sset][nt] + 2, 2), vr(vaB[nt]), off + 4 * RB); n += 2
        return n
    per = c.nAw + c.nBw
    LA = c.nbuf - 1
    for st in range(min(LA, c.nst)): issue_stage(st)
    GTS = os.environ.get("GTS") if c.K == 640 else None
    for st in range(c.nst):
        a("s_waitcnt vmcnt(%d)", per * min(LA - 1, c.nst - 1 - st))
        a("s_barrier")
        if GTS: a("s_memrealtime s[%d:%d]", 56 + 2 * st, 57 + 2 * st)
        if st + LA < c.nst: issue_stage(st + LA)
        n = load_frags(st, 0, 0)
        for kap in range(KS):
            if kap + 1 < KS:
                n2 = load_frags(st, kap + 1, (kap + 1) % 2)
                a("s_waitcnt lgkmcnt(%d)", n2)
            else:
                a("s_waitcnt lgkmcnt(0)")
            sset = kap % 2
            for nt in range(NT):
                for mt in range(MT):
                    if DBG_NOMFMA: continue
                    a("v_mfma_f32_32x32x16_bf16 %s, %s, %s, %s", vr(acc[nt][mt], 16), vr(fW[sset][nt], 4), vr(fX[sset][mt], 4), vr(acc[nt][mt], 16))
    a("s_nop 15"); a("s_nop 3")
    return dict(acc=acc, vlane=vlane, s_wm=s_wm, s_wn=s_wn, tmp=[vt0, vt1, vt2], scratch=fX[0][0])

def tile_decode(a, wg_sreg, tilesN, s_tm, s_tn, s_tmp):
    a("s_lshr_b32 %s, %s, 3", sr(s_tmp), sr(wg_sreg))
    a("s_cmp_ge_u32 %s, %d", sr(s_tmp), tilesN)
    a("s_cselect_b32 %s, 1, 0", sr(s_tm))
    a("s_mul_i32 %s, %s, %d", sr(s_tn), sr(s_tm), tilesN)
    a("s_sub_u32 %s, %s, %s", sr(s_tn), sr(s_tmp), sr(s_tn))
    a("s_and_b32 %s, %s, 7", sr(s_tmp), sr(wg_sreg))
    a("s_lshl_b32 %s, %s, 1", sr(s_tmp), sr(s_tmp))
    a("s_add_u32 %s, %s, %s", sr(s_tm), sr(s_tm), sr(s_tmp))

def bf16_round_pair(a, vd, v0_, v1_):
    a("v_cvt_pk_bf16_f32 %s, %s, %s", vr(vd), vr(v0_), vr(v1_))

def emit_silu(a, v, t):
    n = len(v)
    for i in range(n): a("v_mul_f32 %s, %s, %s", vr(t + i), hexf(-1.4426950408889634), vr(v[i]))
    for i in range(n): a("v_exp_f32 %s, %s", vr(t + i), vr(t + i))
    for i in range(n): a("v_add_f32 %s, 1.0, %s", vr(t + i), vr(t + i))
    for i in range(n): a("v_rcp_f32 %s, %s", vr(t + i), vr(t + i))
    for i in range(n): a("v_mul_f32 %s, %s, %s", vr(v[i]), vr(v[i]), vr(t + i))

def gen_gemm1_body(a, wg_sreg=2, BK=64, nbuf=3, nw=4):
    c = GemmCfg(2048, 1728, 640, 32 * nw, 128, BK, 640, 1728, nbuf, nw)
    R = Regs(1, 256); S = Regs(16, 54)
    srdA, srdB, srdO = 4, 8, 12
    sp = S.alloc(2, 2)
    a("s_load_dwordx2 %s, s[0:1], %d", sr(sp, 2), KARG['u'])
    sp2 = S.alloc(2, 2)
    a("s_load_dwordx2 %s, s[0:1], %d", sr(sp2, 2), KARG['w1'])
    sp3 = S.alloc(2, 2)
    a("s_load_dwordx2 %s, s[0:1], %d", sr(sp3, 2), KARG['ws'])
    a("s_waitcnt lgkmcnt(0)")
    srd(a, srdA, sr(sp), sr(sp + 1), 2048 * 640 * 2)
    srd(a, srdB, sr(sp2), sr(sp2 + 1), 640 * 1728 * 2)
    srd(a, srdO, sr(sp3), sr(sp3 + 1), 2048 * 1728 * 2)
    s_tm = S.alloc(); s_tn = S.alloc(); s_row0 = S.alloc(); s_col0 = S.alloc(); s_wave = S.alloc()
    tilesN = c.tilesN
    if nw == 4:
        tile_decode(a, wg_sreg, tilesN, s_tm, s_tn, s_row0)
        a("s_lshl_b32 %s, %s, 7", sr(s_row0), sr(s_tm))
    else:
        a("s_and_b32 %s, %s, 7", sr(s_tm), sr(wg_sreg)); a("s_lshr_b32 %s, %s, 3", sr(s_tn), sr(wg_sreg))
        a("s_lshl_b32 %s, %s, 8", sr(s_row0), sr(s_tm))
    a("s_lshl_b32 %s, %s, 7", sr(s_col0), sr(s_tn))
    r = emit_gemm_mainloop(a, c, R, S, srdA, srdB, s_row0, s_col0, s_wave)
    acc, vlane = r['acc'], r['vlane']
    s_t = S.alloc()
    a("s_lshl_b32 %s, %s, 6", sr(s_t), sr(r['s_wn']))
    a("s_add_u32 %s, %s, %s", sr(s_t), sr(s_t), sr(s_col0))
    Lskip = a.newlabel("g1skip")
    a("s_cmp_ge_u32 %s, %d", sr(s_t), c.N)
    a("s_cbranch_scc1 %s", Lskip)
    t0, t1, t2 = r['tmp']
    voff = R.alloc()
    a("v_and_b32 %s, 31, %s", vr(t0), vr(vlane))
    a("s_lshl_b32 %s, %s, 6", sr(s_tm), sr(r['s_wm']))
    a("s_add_u32 %s, %s, %s", sr(s_tm), sr(s_tm), sr(s_row0))
    a("v_add_u32 %s, %s, %s", vr(t0), sr(s_tm), vr(t0))
    a("s_mov_b32 %s, %d", sr(s_tn), 1728 * 2)
    a("v_mul_lo_u32 %s, %s, %s", vr(voff), vr(t0), sr(s_tn))
    a("v_lshrrev_b32 %s, 5, %s", vr(t1), vr(vlane))
    a("v_lshlrev_b32 %s, 3, %s", vr(t1), vr(t1))
    a("s_lshl_b32 %s, %s, 1", sr(s_t), sr(s_t))
    a("v_add3_u32 %s, %s, %s, %s", vr(voff), vr(voff), vr(t1), sr(s_t))
    pk = R.alloc(2, 2)
    voffs = [voff] + [R.alloc() for _ in range(c.MT - 1)]
    for mt in range(1, c.MT):
        a("v_add_u32 %s, 0x%x, %s", vr(voffs[mt]), mt * 32 * 1728 * 2, vr(voff))
    pk4 = r['scratch']; st8 = pk4 + 4
    for nt in range(c.NT):
        for mt in range(c.MT):
            for Q2 in range(2):
                regs = [acc[nt][mt] + 8 * Q2 + e for e in range(8)]
                for k in range(4):
                    bf16_round_pair(a, pk4 + k, regs[2 * k], regs[2 * k + 1])
                for k in range(4):
                    a("v_lshlrev_b32 %s, 16, %s", vr(regs[2 * k]), vr(pk4 + k)); a("v_and_b32 %s, 0xffff0000, %s", vr(regs[2 * k + 1]), vr(pk4 + k))
                if not os.environ.get("NOSILU"): emit_silu(a, regs, st8)
                for k in range(4):
                    bf16_round_pair(a, pk4 + k, regs[2 * k], regs[2 * k + 1])
                for h_ in range(2):
                    a("buffer_store_dwordx2 %s, %s, %s, 0 offen offset:%d", vr(pk4 + 2 * h_, 2), vr(voffs[mt]), sr(srdO, 4), (nt * 32 + 8 * (2 * Q2 + h_)) * 2)
    a.label(Lskip)
    if os.environ.get("GTS"):
        a("s_waitcnt vmcnt(0) lgkmcnt(0)")
        a("s_memrealtime s[54:55]")
        a("s_load_dwordx2 s[4:5], s[0:1], 96")
        a("s_waitcnt lgkmcnt(0)")
        a("s_mov_b32 s6, 256"); a("s_mov_b32 s7, 0x00020000")
        a("s_cmp_eq_u32 %s, %s", sr(wg_sreg), os.environ.get("GTS"))
        a("s_cbranch_scc0 L_gts_skip")
        a("v_cmp_eq_u32 vcc, 0, v0")
        a("s_and_saveexec_b64 s[10:11], vcc")
        a("v_mov_b32 v2, 0")
        for i in range(21):
            a("s_sub_u32 s100, s%d, s96", 56 + 2 * i if i < 20 else 54)
            a("v_mov_b32 v3, s100")
            a("buffer_store_dword v3, v2, s[4:7], 0 offen offset:%d", 4 * i)
        a("s_mov_b64 exec, s[10:11]")
        a.label("L_gts_skip")
    return c, R.hi

def gen_gemm2_body(a, wg_sreg=2, BK=64, nbuf=3):
    c = GemmCfg(2048, 640, 1728, 128, 64, BK, 1728, 640, nbuf)
    R = Regs(1, 256); S = Regs(16, 100)
    srdA, srdB, srdO, srdW = 4, 8, 12, S.alloc(4, 4)
    sp = S.alloc(2, 2)
    a("s_load_dwordx2 %s, s[0:1], %d", sr(sp, 2), KARG['ws'])
    sp2 = S.alloc(2, 2)
    a("s_load_dwordx2 %s, s[0:1], %d", sr(sp2, 2), KARG['w2'])
    sp3 = S.alloc(2, 2)
    a("s_load_dwordx2 %s, s[0:1], %d", sr(sp3, 2), KARG['out'])
    a("s_waitcnt lgkmcnt(0)")
    srd(a, srdA, sr(sp), sr(sp + 1), 2048 * 1728 * 2)
    srd(a, srdB, sr(sp2), sr(sp2 + 1), 1728 * 640 * 2)
    srd(a, srdO, sr(sp3), sr(sp3 + 1), 2048 * 640 * 2)
    srd(a, srdW, sr(sp), sr(sp + 1), WS_G + 2048 * 4)
    s_tm = S.alloc(); s_tn = S.alloc(); s_row0 = S.alloc(); s_col0 = S.alloc(); s_wave = S.alloc()
    tilesN = c.tilesN
    tile_decode(a, wg_sreg, tilesN, s_tm, s_tn, s_row0)
    a("s_lshl_b32 %s, %s, 7", sr(s_row0), sr(s_tm))
    a("s_lshl_b32 %s, %s, 6", sr(s_col0), sr(s_tn))
    if os.environ.get("PFL2", "1") == "1":
        mk = R.mark()
        pv = R.alloc(); pt = R.alloc(); pd = R.alloc(4, 4); s_p = S.alloc()
        a("v_lshlrev_b32 %s, 4, v0", vr(pv))
        a("s_mul_i32 %s, %s, %d", sr(s_p), sr(s_row0), 3456)
        a("s_mul_i32 %s, %s, %d", sr(s_wave), sr(s_tn), 44240)
        a("s_add_u32 %s, %s, %s", sr(s_p), sr(s_p), sr(s_wave))
        for i in range(11):
            a("buffer_load_dwordx4 %s, %s, %s, %s offen", vr(pd, 4), vr(pv), sr(srdA, 4), sr(s_p))
            if i < 10: a("s_add_u32 %s, %s, 4096", sr(s_p), sr(s_p))
        a("v_lshrrev_b32 %s, 3, v0", vr(pv)); a("v_mul_u32_u24 %s, 1280, %s", vr(pv), vr(pv))
        a("v_and_b32 %s, 7, v0", vr(pt)); a("v_lshl_add_u32 %s, %s, 4, %s", vr(pv), vr(pt), vr(pv))
        a("s_and_b32 %s, %s, 1", sr(s_p), sr(s_tm)); a("s_mul_i32 %s, %s, %d", sr(s_p), sr(s_p), 864 * 1280)
        a("s_lshl_b32 %s, %s, 1", sr(s_wave), sr(s_col0)); a("s_add_u32 %s, %s, %s", sr(s_p), sr(s_p), sr(s_wave))
        for i in range(27):
            a("buffer_load_dwordx4 %s, %s, %s, %s offen", vr(pd, 4), vr(pv), sr(srdB, 4), sr(s_p))
            if i < 26: a("s_add_u32 %s, %s, %d", sr(s_p), sr(s_p), 32 * 1280)
    r = emit_gemm_mainloop(a, c, R, S, srdA, srdB, s_row0, s_col0, s_wave)
    acc, vlane = r['acc'], r['vlane']
    t0, t1, t2 = r['tmp']
    PITCH = 272
    a("s_barrier")
    vtid = R.alloc(); va = R.alloc(); vl = R.alloc(); tmp4 = R.alloc(4, 4)
    for j in range(4):
        a("v_add_u32 %s, %d, v0", vr(vtid), j * 256)
        a("v_lshrrev_b32 %s, 4, %s", vr(va), vr(vtid))
        a("v_and_b32 %s, 15, %s", vr(vl), vr(vtid))
        a("v_add_u32 %s, %s, %s", vr(t0), sr(s_col0), vr(va))
        a("v_lshlrev_b32 %s, 12, %s", vr(t0), vr(t0))
        a("v_lshl_add_u32 %s, %s, 4, %s", vr(t0), vr(vl), vr(t0))
        a("s_lshl_b32 %s, %s, 1", sr(s_tm), sr(s_row0))
        a("s_add_u32 %s, %s, 0x%x", sr(s_tm), sr(s_tm), WS_AT)
        a("buffer_load_dwordx4 %s, %s, %s, %s offen", vr(tmp4, 4), vr(t0), sr(srdW, 4), sr(s_tm))
        a("s_mov_b32 %s, %d", sr(s_tn), PITCH)
        a("v_mul_lo_u32 %s, %s, %s", vr(t1), vr(va), sr(s_tn))
        a("v_lshl_add_u32 %s, %s, 4, %s", vr(t1), vr(vl), vr(t1))
        a("s_waitcnt vmcnt(0)")
        a("ds_write_b128 %s, %s", vr(t1), vr(tmp4, 4))
    a("s_waitcnt lgkmcnt(0)")
    a("s_barrier")
    vat = R.alloc()
    a("v_lshrrev_b32 %s, 5, %s", vr(t0), vr(vlane)); a("v_lshlrev_b32 %s, 2, %s", vr(t0), vr(t0))
    a("v_lshrrev_b32 %s, 2, %s", vr(t1), vr(vlane)); a("v_and_b32 %s, 3, %s", vr(t1), vr(t1))
    a("v_add_u32 %s, %s, %s", vr(t0), vr(t0), vr(t1))
    a("s_lshl_b32 %s, %s, 5", sr(s_tm), sr(r['s_wn']))
    a("v_add_u32 %s, %s, %s", vr(t0), sr(s_tm), vr(t0))
    a("s_mov_b32 %s, %d", sr(s_tn), PITCH)
    a("v_mul_lo_u32 %s, %s, %s", vr(vat), vr(t0), sr(s_tn))
    a("v_lshrrev_b32 %s, 4, %s", vr(t0), vr(vlane)); a("v_and_b32 %s, 1, %s", vr(t0), vr(t0)); a("v_lshlrev_b32 %s, 5, %s", vr(t0), vr(t0))
    a("v_and_b32 %s, 3, %s", vr(t1), vr(vlane)); a("v_lshl_add_u32 %s, %s, 3, %s", vr(t0), vr(t1), vr(t0))
    a("s_lshl_b32 %s, %s, 7", sr(s_tm), sr(r['s_wm']))
    a("v_add3_u32 %s, %s, %s, %s", vr(vat), vr(vat), vr(t0), sr(s_tm))
    voff = R.alloc(); vg = [R.alloc() for _ in range(c.MT)]
    a("v_and_b32 %s, 31, %s", vr(t0), vr(vlane))
    a("s_lshl_b32 %s, %s, 6", sr(s_tm), sr(r['s_wm']))
    a("s_add_u32 %s, %s, %s", sr(s_tm), sr(s_tm), sr(s_row0))
    a("v_add_u32 %s, %s, %s", vr(t0), sr(s_tm), vr(t0))
    a("s_mov_b32 %s, 0x%x", sr(s_tm), WS_G)
    for mt in range(c.MT):
        a("v_lshlrev_b32 %s, 2, %s", vr(t1), vr(t0))
        a("buffer_load_dword %s, %s, %s, %s offen offset:%d", vr(vg[mt]), vr(t1), sr(srdW, 4), sr(s_tm), mt * 128)
    a("v_mul_u32_u24 %s, %d, %s", vr(voff), 640 * 2, vr(t0))
    a("v_lshrrev_b32 %s, 5, %s", vr(t1), vr(vlane)); a("v_lshlrev_b32 %s, 3, %s", vr(t1), vr(t1))
    a("s_lshl_b32 %s, %s, 6", sr(s_tn), sr(r['s_wn']))
    a("s_lshl_b32 %s, %s, 1", sr(s_tm), sr(s_col0))
    a("s_add_u32 %s, %s, %s", sr(s_tm), sr(s_tm), sr(s_tn))
    a("v_add3_u32 %s, %s, %s, %s", vr(voff), vr(voff), vr(t1), sr(s_tm))
    av = R.alloc(8, 4); pk = R.alloc(2, 2); w = R.alloc(4); g1 = R.alloc()
    a("s_waitcnt vmcnt(0)")
    for mt in range(c.MT):
        for Q in range(4):
            a("ds_read_b64_tr_b16 %s, %s offset:%d", vr(av + 2 * (Q % 4), 2), vr(vat), Q * 8 * PITCH + mt * 64)
        a("v_sub_f32 %s, 1.0, %s", vr(g1), vr(vg[mt]))
        a("v_cvt_pk_bf16_f32 %s, %s, %s", vr(g1), vr(g1), vr(g1))
        a("v_lshlrev_b32 %s, 16, %s", vr(g1), vr(g1))
        a("s_waitcnt lgkmcnt(0)")
        for Q in range(4):
            regs = [acc[0][mt] + 4 * Q + e for e in range(4)]
            bf16_round_pair(a, pk, regs[0], regs[1]); bf16_round_pair(a, pk + 1, regs[2], regs[3])
            a("v_lshlrev_b32 %s, 16, %s", vr(regs[0]), vr(pk)); a("v_and_b32 %s, 0xffff0000, %s", vr(regs[1]), vr(pk))
            a("v_lshlrev_b32 %s, 16, %s", vr(regs[2]), vr(pk + 1)); a("v_and_b32 %s, 0xffff0000, %s", vr(regs[3]), vr(pk + 1))
            a("v_lshlrev_b32 %s, 16, %s", vr(w), vr(av + 2 * Q)); a("v_and_b32 %s, 0xffff0000, %s", vr(w + 1), vr(av + 2 * Q))
            a("v_lshlrev_b32 %s, 16, %s", vr(w + 2), vr(av + 2 * Q + 1)); a("v_and_b32 %s, 0xffff0000, %s", vr(w + 3), vr(av + 2 * Q + 1))
            for e in range(4):
                a("v_mul_f32 %s, %s, %s", vr(w + e), vr(vg[mt]), vr(w + e))
                a("v_mul_f32 %s, %s, %s", vr(regs[e]), vr(g1), vr(regs[e]))
            bf16_round_pair(a, pk, w, w + 1); bf16_round_pair(a, pk + 1, w + 2, w + 3)
            a("v_lshlrev_b32 %s, 16, %s", vr(w), vr(pk)); a("v_and_b32 %s, 0xffff0000, %s", vr(w + 1), vr(pk))
            a("v_lshlrev_b32 %s, 16, %s", vr(w + 2), vr(pk + 1)); a("v_and_b32 %s, 0xffff0000, %s", vr(w + 3), vr(pk + 1))
            bf16_round_pair(a, pk, regs[0], regs[1]); bf16_round_pair(a, pk + 1, regs[2], regs[3])
            a("v_lshlrev_b32 %s, 16, %s", vr(regs[0]), vr(pk)); a("v_and_b32 %s, 0xffff0000, %s", vr(regs[1]), vr(pk))
            a("v_lshlrev_b32 %s, 16, %s", vr(regs[2]), vr(pk + 1)); a("v_and_b32 %s, 0xffff0000, %s", vr(regs[3]), vr(pk + 1))
            for e in range(4):
                a("v_add_f32 %s, %s, %s", vr(w + e), vr(w + e), vr(regs[e]))
            bf16_round_pair(a, pk, w, w + 1); bf16_round_pair(a, pk + 1, w + 2, w + 3)
            a("buffer_store_dwordx2 %s, %s, %s, 0 offen offset:%d", vr(pk, 2), vr(voff), sr(srdO, 4), 8 * Q * 2)
        if mt + 1 < c.MT:
            a("v_add_u32 %s, 0x%x, %s", vr(voff), 32 * 640 * 2, vr(voff))
    return c, R.hi

def gen_gate_body(a, wg_sreg, nthreads=256):
    R = Regs(1, 64); S = Regs(16, 100)
    srdX, srdG, srdW = 4, 8, 12
    sp = S.alloc(2, 2); sp2 = S.alloc(2, 2); sp3 = S.alloc(2, 2)
    a("s_load_dwordx2 %s, s[0:1], %d", sr(sp, 2), KARG['u'])
    a("s_load_dwordx2 %s, s[0:1], %d", sr(sp2, 2), KARG['gw'])
    a("s_load_dwordx2 %s, s[0:1], %d", sr(sp3, 2), KARG['ws'])
    a("s_waitcnt lgkmcnt(0)")
    srd(a, srdX, sr(sp), sr(sp + 1), 2048 * 640 * 2)
    srd(a, srdG, sr(sp2), sr(sp2 + 1), 640 * 2)
    srd(a, srdW, sr(sp3), sr(sp3 + 1), WS_G + 2048 * 4)
    vl = R.alloc(); vw = R.alloc(); vo = R.alloc(); t = R.alloc(4)
    a("v_and_b32 %s, 63, v0", vr(vl))
    a("v_lshrrev_b32 %s, 6, v0", vr(vw))
    s_r = S.alloc()
    a("s_lshl_b32 %s, %s, %d", sr(s_r), sr(wg_sreg), 3 if nthreads == 512 else 2)
    a("v_add_u32 %s, %s, %s", vr(vw), sr(s_r), vr(vw))
    a("v_mul_u32_u24 %s, %d, %s", vr(vo), 1280, vr(vw))
    a("v_lshl_add_u32 %s, %s, 2, %s", vr(vo), vr(vl), vr(vo))
    a("v_lshlrev_b32 %s, 2, %s", vr(t), vr(vl))
    xs = R.alloc(5); gs = R.alloc(5)
    for j in range(5):
        a("buffer_load_dword %s, %s, %s, 0 offen offset:%d", vr(xs + j), vr(vo), sr(srdX, 4), j * 256)
        a("buffer_load_dword %s, %s, %s, 0 offen offset:%d", vr(gs + j), vr(t), sr(srdG, 4), j * 256)
    acc = R.alloc()
    a("v_mov_b32 %s, 0", vr(acc))
    a("s_waitcnt vmcnt(0)")
    for j in range(5):
        a("v_lshlrev_b32 %s, 16, %s", vr(t), vr(xs + j)); a("v_lshlrev_b32 %s, 16, %s", vr(t + 1), vr(gs + j))
        a("v_and_b32 %s, 0xffff0000, %s", vr(t + 2), vr(xs + j)); a("v_and_b32 %s, 0xffff0000, %s", vr(t + 3), vr(gs + j))
        a("v_mul_f32 %s, %s, %s", vr(t), vr(t), vr(t + 1)); a("v_mul_f32 %s, %s, %s", vr(t + 2), vr(t + 2), vr(t + 3))
        a("v_cvt_pk_bf16_f32 %s, %s, %s", vr(t), vr(t), vr(t + 2))
        a("v_lshlrev_b32 %s, 16, %s", vr(t + 1), vr(t)); a("v_and_b32 %s, 0xffff0000, %s", vr(t + 2), vr(t))
        a("v_add_f32 %s, %s, %s", vr(acc), vr(acc), vr(t + 1)); a("v_add_f32 %s, %s, %s", vr(acc), vr(acc), vr(t + 2))
    for off in (0x041F, 0x081F, 0x101F, 0x201F, 0x401F):
        a("ds_swizzle_b32 %s, %s offset:0x%x", vr(t), vr(acc), off)
        a("s_waitcnt lgkmcnt(0)")
        a("v_add_f32 %s, %s, %s", vr(acc), vr(acc), vr(t))
    s_a = S.alloc(); s_b = S.alloc()
    a("s_nop 1")
    a("v_readlane_b32 %s, %s, 0", sr(s_a), vr(acc))
    a("v_readlane_b32 %s, %s, 32", sr(s_b), vr(acc))
    a("s_nop 3")
    a("v_mov_b32 %s, %s", vr(t), sr(s_a))
    a("v_add_f32 %s, %s, %s", vr(t), sr(s_b), vr(t))
    a("v_cvt_pk_bf16_f32 %s, %s, %s", vr(t), vr(t), vr(t)); a("v_lshlrev_b32 %s, 16, %s", vr(t), vr(t))
    a("v_mul_f32 %s, %s, %s", vr(t), hexf(-1.4426950408889634), vr(t))
    a("v_exp_f32 %s, %s", vr(t), vr(t)); a("s_nop 0")
    a("v_add_f32 %s, 1.0, %s", vr(t), vr(t))
    a("v_rcp_f32 %s, %s", vr(t), vr(t)); a("s_nop 0")
    a("v_cvt_pk_bf16_f32 %s, %s, %s", vr(t), vr(t), vr(t)); a("v_lshlrev_b32 %s, 16, %s", vr(t), vr(t))
    a("v_lshlrev_b32 %s, 2, %s", vr(vw), vr(vw))
    a("v_cmp_eq_u32 vcc, 0, %s", vr(vl))
    s_e = S.alloc(2, 2)
    a("s_and_saveexec_b64 %s, vcc", sr(s_e, 2))
    a("s_mov_b32 %s, 0x%x", sr(s_a), WS_G)
    a("buffer_store_dword %s, %s, %s, %s offen", vr(t), vr(vw), sr(srdW, 4), sr(s_a))
    a("s_mov_b64 exec, %s", sr(s_e, 2))
    if os.environ.get("PFW2", "1") == "1":
        spw = S.alloc(2, 2); srdP = S.alloc(4, 4); pf = R.alloc(8, 4)
        a("s_load_dwordx2 %s, s[0:1], %d", sr(spw, 2), KARG['w2'])
        a("s_waitcnt lgkmcnt(0)")
        srd(a, srdP, sr(spw), sr(spw + 1), 1728 * 640 * 2)
        per = 4320 if nthreads == 256 else 8640
        a("s_mul_i32 %s, %s, %d", sr(s_a), sr(wg_sreg), per)
        a("v_lshlrev_b32 %s, 4, v0", vr(t))
        a("buffer_load_dwordx4 %s, %s, %s, %s offen", vr(pf, 4), vr(t), sr(srdP, 4), sr(s_a))
        a("v_cmp_gt_u32 vcc, %d, v0", (per - nthreads * 16) // 16)
        a("s_and_saveexec_b64 %s, vcc", sr(s_e, 2))
        a("buffer_load_dwordx4 %s, %s, %s, %s offen offset:%d", vr(pf + 4, 4), vr(t), sr(srdP, 4), sr(s_a), nthreads * 16)
        a("s_mov_b64 exec, %s", sr(s_e, 2))
        a("s_waitcnt vmcnt(0)")
    return R.hi
```

```python
import sys, os
from asmlib import *
from gemm import *
from conv import *
def build(path):
    G1BK = int(os.environ.get("G1BK", 32)); G1NB = int(os.environ.get("G1NB", 4)); G2NB = int(os.environ.get("G2NB", 6))
    ORDER = os.environ.get("ORDER", "gcx")
    kernels = []
    bodies = {}
    ac = Asm()
    ac("s_and_b32 s3, s2, 7")
    ac("s_mul_i32 s3, s3, 40")
    ac("s_lshr_b32 s2, s2, 3")
    ac("s_add_u32 s2, s2, s3")
    hc = gen_conv_body(ac, 2); bodies['c'] = (ac, 320)
    a1 = Asm()
    a1("s_setprio %s", os.environ.get("G1PRIO", "3"))
    c1, h1 = gen_gemm1_body(a1, 2, G1BK, G1NB, 8); bodies['g'] = (a1, c1.tilesM * c1.tilesN)
    ag = Asm(); hg = gen_gate_body(ag, 2, 512); bodies['x'] = (ag, 256)
    m = Asm()
    PROFW = os.environ.get("PROFW")
    if PROFW:
        m("s_memrealtime s[96:97]"); m("s_mov_b32 s98, s2")
    for i, r in enumerate(ORDER[:-1]):
        m("s_cmp_lt_u32 s2, %d", bodies[r][1])
        m("s_cbranch_scc1 L_k1_%s", r)
        m("s_sub_u32 s2, s2, %d", bodies[r][1])
    for i, r in enumerate(reversed(ORDER)):
        if i > 0: m.label("L_k1_%s" % r)
        m.lines += bodies[r][0].lines
        if PROFW:
            m("s_branch L_k1_prof")
        else:
            m("s_endpgm")
    if PROFW:
        m.label("L_k1_prof")
        m("s_waitcnt vmcnt(0) lgkmcnt(0)")
        m("s_memrealtime s[100:101]")
        m("s_load_dwordx2 s[4:5], s[0:1], 104")
        m("s_getreg_b32 s8, hwreg(HW_REG_HW_ID)")
        m("s_getreg_b32 s9, hwreg(HW_REG_XCC_ID)")
        m("s_waitcnt lgkmcnt(0)")
        m("s_mov_b32 s6, 0x2000000"); m("s_mov_b32 s7, 0x00020000")
        m("v_cmp_eq_u32 vcc, 0, v0")
        m("s_and_saveexec_b64 s[10:11], vcc")
        m("v_mov_b32 v2, s96"); m("v_mov_b32 v3, s100"); m("v_mov_b32 v4, s8"); m("v_mov_b32 v5, s9")
        m("s_lshl_b32 s98, s98, 4"); m("s_add_u32 s98, s98, 0x1000000")
        m("v_mov_b32 v6, 0")
        m("buffer_store_dwordx4 v[2:5], v6, s[4:7], s98 offen")
        m("s_endpgm")
    kernels.append(("k1_kernel", sum(b[1] for b in bodies.values()), max(CONV_LDS, c1.lds), m, max(hc, h1, hg)))
    a = Asm(); c2, hi = gen_gemm2_body(a, 2, 64, G2NB)
    kernels.append(("gemm2_kernel", c2.tilesM * c2.tilesN, max(c2.lds, 64 * 272), a, hi))
    out = ""
    for (n, g, lds, a, hi) in kernels:
        out += "; @launch kernel=%s grid=(%d,1,1) block=(%d,1,1) lds=%d\n" % (n, g, 512 if n == "k1_kernel" else 256, lds)
    out += '.amdgcn_target "amdgcn-amd-amdhsa--gfx950"\n.text\n'
    for (n, g, lds, a, hi) in kernels:
        out += kernel_header(n)
        out += "    s_cmp_ge_u32 s2, %d\n    s_cbranch_scc1 L_end_%s\n" % (g, n)
        out += a.text() + "L_end_%s:\n    s_endpgm\n" % n
    out += '.section .rodata,"a"\n'
    for (n, g, lds, a, hi) in kernels:
        out += ".p2align 6\n" + kernel_desc(n, hi)
        print(n, "grid", g, "lds", lds, "vgpr", hi)
    open(path, "w").write(out)
if __name__ == "__main__":
    build(sys.argv[1] if len(sys.argv) > 1 else "full.s")
```

```python
from asmlib import *

WS_H   = 0
WS_AT  = 8 << 20
WS_G   = 12 << 20

KARG = dict(u=0, lar=8, aim=16, cr=24, ci=32, ldt=40, dsk=48, bx=56, w1=64, w2=72, gw=80, out=88, dbg=96, ws=104)

def srd(a, s, base_lo, base_hi, size):
    a("s_mov_b32 %s, %s", sr(s), base_lo)
    a("s_mov_b32 %s, %s", sr(s+1), base_hi)
    a("s_mov_b32 %s, 0x%x", sr(s+2), size)
    a("s_mov_b32 %s, 0x00020000", sr(s+3))

def fA(row, BK):
    return ((row >> 1) & 7) if BK == 64 else ((row >> 2) & 3)
def fB(k, BN):
    if BN == 128: return (k & 3) << 2
    if BN == 64: return ((k >> 1) & 1) << 2
    raise ValueError
class GemmCfg:
    def __init__(s, M, N, K, BM, BN, BK, lda, ldb, nbuf=3, nw=4):
        s.M, s.N, s.K, s.BM, s.BN, s.BK, s.lda, s.ldb, s.nbuf = M, N, K, BM, BN, BK, lda, ldb, nbuf
        s.nw = nw
        s.MT = BM // (32 * (nw // 2)); s.NT = BN // 64
        s.KS = BK // 16
        s.nst = K // BK
        assert K % BK == 0
        s.abytes = BM * BK * 2; s.bbytes = BK * BN * 2
        s.nAw = s.abytes // 1024 // nw; s.nBw = s.bbytes // 1024 // nw
        s.tilesM = M // BM; s.tilesN = (N + BN - 1) // BN
        s.lds = nbuf * (s.abytes + s.bbytes)

import os
DBG_NOMFMA = os.environ.get("NOMFMA"); DBG_NODMA = os.environ.get("NODMA"); DBG_NOLDS = os.environ.get("NOLDS")
def emit_gemm_mainloop(a, c, R, S, srdA, srdB, s_row0, s_col0, s_wave, lds_base=0):
    MT, NT, KS, BK, BM, BN = c.MT, c.NT, c.KS, c.BK, c.BM, c.BN
    RA = BK * 2; RB = BN * 2
    chA = RA // 16; chB = RB // 16
    vlane = R.alloc(); vt0 = R.alloc(); vt1 = R.alloc(); vt2 = R.alloc()
    a("v_and_b32 %s, 63, v0", vr(vlane))
    a("v_lshrrev_b32 %s, 6, v0", vr(vt0)); a("s_nop 0")
    a("v_readfirstlane_b32 %s, %s", sr(s_wave), vr(vt0))
    a("s_nop 4")
    s_wm = S.alloc(); s_wn = S.alloc(); s_t0 = S.alloc(); s_t1 = S.alloc()
    a("s_lshr_b32 %s, %s, 1", sr(s_wm), sr(s_wave))
    a("s_and_b32 %s, %s, 1", sr(s_wn), sr(s_wave))
    vdA = [R.alloc() for _ in range(c.nAw)]
    vdB = [R.alloc() for _ in range(c.nBw)]
    lg = lambda x: x.bit_length() - 1
    for i in range(c.nAw):
        a("s_mul_i32 %s, %s, %d", sr(s_t0), sr(s_wave), c.nAw * 64)
        a("s_add_u32 %s, %s, %d", sr(s_t0), sr(s_t0), i * 64)
        a("v_add_u32 %s, %s, %s", vr(vt0), sr(s_t0), vr(vlane))
        a("v_lshrrev_b32 %s, %d, %s", vr(vt1), lg(chA), vr(vt0))
        a("v_and_b32 %s, %d, %s", vr(vt0), chA - 1, vr(vt0))
        if BK == 64:
            a("v_lshrrev_b32 %s, 1, %s", vr(vt2), vr(vt1)); a("v_and_b32 %s, 7, %s", vr(vt2), vr(vt2))
        else:
            a("v_lshrrev_b32 %s, 2, %s", vr(vt2), vr(vt1)); a("v_and_b32 %s, 3, %s", vr(vt2), vr(vt2))
        a("v_xor_b32 %s, %s, %s", vr(vt0), vr(vt0), vr(vt2))
        a("v_add_u32 %s, %s, %s", vr(vt1), sr(s_row0), vr(vt1))
        a("s_mov_b32 %s, %d", sr(s_t1), c.lda * 2)
        a("v_mul_lo_u32 %s, %s, %s", vr(vt1), vr(vt1), sr(s_t1))
        a("v_lshl_add_u32 %s, %s, 4, %s", vr(vdA[i]), vr(vt0), vr(vt1))
    for i in range(c.nBw):
        a("s_mul_i32 %s, %s, %d", sr(s_t0), sr(s_wave), c.nBw * 64)
        a("s_add_u32 %s, %s, %d", sr(s_t0), sr(s_t0), i * 64)
        a("v_add_u32 %s, %s, %s", vr(vt0), sr(s_t0), vr(vlane))
        a("v_lshrrev_b32 %s, %d, %s", vr(vt1), lg(chB), vr(vt0))
        a("v_and_b32 %s, %d, %s", vr(vt0), chB - 1, vr(vt0))
        if BN == 128:
            a("v_and_b32 %s, 3, %s", vr(vt2), vr(vt1)); a("v_lshlrev_b32 %s, 2, %s", vr(vt2), vr(vt2))
        else:
            a("v_lshrrev_b32 %s, 1, %s", vr(vt2), vr(vt1)); a("v_and_b32 %s, 1, %s", vr(vt2), vr(vt2)); a("v_lshlrev_b32 %s, 2, %s", vr(vt2), vr(vt2))
        a("v_xor_b32 %s, %s, %s", vr(vt0), vr(vt0), vr(vt2))
        a("s_mov_b32 %s, %d", sr(s_t1), c.ldb * 2)
        a("v_mul_lo_u32 %s, %s, %s", vr(vt1), vr(vt1), sr(s_t1))
        a("v_lshl_add_u32 %s, %s, 4, %s", vr(vt0), vr(vt0), vr(vt1))
        a("s_lshl_b32 %s, %s, 1", sr(s_t1), sr(s_col0))
        a("v_add_u32 %s, %s, %s", vr(vdB[i]), sr(s_t1), vr(vt0))
    Aoff = lambda b: lds_base + b * c.abytes
    Boff = lambda b: lds_base + c.nbuf * c.abytes + b * c.bbytes
    s_mA = S.alloc(); s_mB = S.alloc()
    a("s_mul_i32 %s, %s, %d", sr(s_mA), sr(s_wave), c.nAw * 1024)
    a("s_mul_i32 %s, %s, %d", sr(s_mB), sr(s_wave), c.nBw * 1024)
    s_soA = S.alloc(); s_soB = S.alloc()
    def issue_stage(st):
        if DBG_NODMA: return
        b = st % c.nbuf
        a("s_mov_b32 %s, %d", sr(s_soA), st * BK * 2)
        a("s_mov_b32 %s, %d", sr(s_soB), st * BK * c.ldb * 2)
        for i in range(c.nAw):
            a("s_add_u32 m0, %s, %d", sr(s_mA), Aoff(b) + i * 1024)
            a("s_nop 0")
            a("buffer_load_dwordx4 %s, %s, %s offen lds", vr(vdA[i]), sr(srdA, 4), sr(s_soA))
        for i in range(c.nBw):
            a("s_add_u32 m0, %s, %d", sr(s_mB), Boff(b) + i * 1024)
            a("s_nop 0")
            a("buffer_load_dwordx4 %s, %s, %s offen lds", vr(vdB[i]), sr(srdB, 4), sr(s_soB))
    vaA = [[R.alloc() for _ in range(KS)] for _ in range(MT)]
    a("v_and_b32 %s, 31, %s", vr(vt0), vr(vlane))
    a("v_lshrrev_b32 %s, 5, %s", vr(vt1), vr(vlane))
    for mt in range(MT):
        a("s_mul_i32 %s, %s, %d", sr(s_t0), sr(s_wm), MT * 32)
        a("s_add_u32 %s, %s, %d", sr(s_t0), sr(s_t0), mt * 32)
        a("v_add_u32 %s, %s, %s", vr(vt2), sr(s_t0), vr(vt0))
        vf = R.alloc()
        if BK == 64:
            a("v_lshrrev_b32 %s, 1, %s", vr(vf), vr(vt2)); a("v_and_b32 %s, 7, %s", vr(vf), vr(vf))
        else:
            a("v_lshrrev_b32 %s, 2, %s", vr(vf), vr(vt2)); a("v_and_b32 %s, 3, %s", vr(vf), vr(vf))
        for kap in range(KS):
            t = vaA[mt][kap]
            a("v_add_u32 %s, %d, %s", vr(t), 2 * kap, vr(vt1))
            a("v_xor_b32 %s, %s, %s", vr(t), vr(t), vr(vf))
            a("v_lshlrev_b32 %s, 4, %s", vr(t), vr(t))
            a("v_lshl_add_u32 %s, %s, %d, %s", vr(t), vr(vt2), lg(RA), vr(t))
        R.release(vf)
    vaA2 = None
    if Aoff(c.nbuf - 1) >= 65536:
        vaA2 = [[R.alloc() for _ in range(KS)] for _ in range(MT)]
        for mt in range(MT):
            for kap in range(KS):
                a("v_add_u32 %s, 0x10000, %s", vr(vaA2[mt][kap]), vr(vaA[mt][kap]))
    vaB = [R.alloc() for _ in range(NT)]
    vr_ = R.alloc(); vk = R.alloc()
    a("v_lshrrev_b32 %s, 2, %s", vr(vr_), vr(vlane)); a("v_and_b32 %s, 3, %s", vr(vr_), vr(vr_))
    a("v_lshrrev_b32 %s, 5, %s", vr(vk), vr(vlane)); a("v_lshl_add_u32 %s, %s, 3, %s", vr(vk), vr(vk), vr(vr_))
    for nt in range(NT):
        t = vaB[nt]
        a("v_lshrrev_b32 %s, 4, %s", vr(vt0), vr(vlane)); a("v_and_b32 %s, 1, %s", vr(vt0), vr(vt0)); a("v_lshlrev_b32 %s, 5, %s", vr(vt0), vr(vt0))
        a("v_and_b32 %s, 3, %s", vr(vt1), vr(vlane)); a("v_lshl_add_u32 %s, %s, 3, %s", vr(vt0), vr(vt1), vr(vt0))
        a("s_mul_i32 %s, %s, %d", sr(s_t0), sr(s_wn), BN)
        a("s_add_u32 %s, %s, %d", sr(s_t0), sr(s_t0), 64 * nt)
        a("v_add_u32 %s, %s, %s", vr(vt0), sr(s_t0), vr(vt0))
        if BN == 128:
            a("v_lshlrev_b32 %s, 6, %s", vr(vt1), vr(vr_))
        else:
            a("v_lshrrev_b32 %s, 1, %s", vr(vt1), vr(vr_)); a("v_lshlrev_b32 %s, 6, %s", vr(vt1), vr(vt1))
        a("v_xor_b32 %s, %s, %s", vr(vt0), vr(vt0), vr(vt1))
        a("v_lshl_add_u32 %s, %s, %d, %s", vr(t), vr(vk), lg(RB), vr(vt0))
        a("v_add_u32 %s, %d, %s", vr(t), Boff(0), vr(t))
    acc = [[R.alloc(16, 4) for _ in range(MT)] for _ in range(NT)]
    for nt in range(NT):
        for mt in range(MT):
            for r in range(16):
                a("v_mov_b32 %s, 0", vr(acc[nt][mt] + r))
    fX = [[R.alloc(4, 4) for _ in range(MT)] for _ in range(2)]
    fW = [[R.alloc(4, 4) for _ in range(NT)] for _ in range(2)]
    def load_frags(st, kap, sset):
        b = st % c.nbuf
        n = 0
        if DBG_NOLDS: return 0
        for mt in range(MT):
            if Aoff(b) >= 65536:
                a("ds_read_b128 %s, %s offset:%d", vr(fX[sset][mt], 4), vr(vaA2[mt][kap]), Aoff(b) - 65536); n += 1
            else:
                a("ds_read_b128 %s, %s offset:%d", vr(fX[sset][mt], 4), vr(vaA[mt][kap]), Aoff(b)); n += 1
        for nt in range(NT):
            off = b * c.bbytes + kap * 16 * RB
            a("ds_read_b64_tr_b16 %s, %s offset:%d", vr(fW[sset][nt], 2), vr(vaB[nt]), off)
            a("ds_read_b64_tr_b16 %s, %s offset:%d", vr(fW[sset][nt] + 2, 2), vr(vaB[nt]), off + 4 * RB); n += 2
        return n
    per = c.nAw + c.nBw
    LA = c.nbuf - 1
    for st in range(min(LA, c.nst)): issue_stage(st)
    GTS = os.environ.get("GTS") if c.K == 640 else None
    for st in range(c.nst):
        a("s_waitcnt vmcnt(%d)", per * min(LA - 1, c.nst - 1 - st))
        a("s_barrier")
        if GTS: a("s_memrealtime s[%d:%d]", 56 + 2 * st, 57 + 2 * st)
        if st + LA < c.nst: issue_stage(st + LA)
        n = load_frags(st, 0, 0)
        for kap in range(KS):
            if kap + 1 < KS:
                n2 = load_frags(st, kap + 1, (kap + 1) % 2)
                a("s_waitcnt lgkmcnt(%d)", n2)
            else:
                a("s_waitcnt lgkmcnt(0)")
            sset = kap % 2
            for nt in range(NT):
                for mt in range(MT):
                    if DBG_NOMFMA: continue
                    a("v_mfma_f32_32x32x16_bf16 %s, %s, %s, %s", vr(acc[nt][mt], 16), vr(fW[sset][nt], 4), vr(fX[sset][mt], 4), vr(acc[nt][mt], 16))
    a("s_nop 15"); a("s_nop 3")
    return dict(acc=acc, vlane=vlane, s_wm=s_wm, s_wn=s_wn, tmp=[vt0, vt1, vt2], scratch=fX[0][0])

def tile_decode(a, wg_sreg, tilesN, s_tm, s_tn, s_tmp):
    a("s_lshr_b32 %s, %s, 3", sr(s_tmp), sr(wg_sreg))
    a("s_cmp_ge_u32 %s, %d", sr(s_tmp), tilesN)
    a("s_cselect_b32 %s, 1, 0", sr(s_tm))
    a("s_mul_i32 %s, %s, %d", sr(s_tn), sr(s_tm), tilesN)
    a("s_sub_u32 %s, %s, %s", sr(s_tn), sr(s_tmp), sr(s_tn))
    a("s_and_b32 %s, %s, 7", sr(s_tmp), sr(wg_sreg))
    a("s_lshl_b32 %s, %s, 1", sr(s_tmp), sr(s_tmp))
    a("s_add_u32 %s, %s, %s", sr(s_tm), sr(s_tm), sr(s_tmp))

def bf16_round_pair(a, vd, v0_, v1_):
    a("v_cvt_pk_bf16_f32 %s, %s, %s", vr(vd), vr(v0_), vr(v1_))

def emit_silu(a, v, t):
    n = len(v)
    for i in range(n): a("v_mul_f32 %s, %s, %s", vr(t + i), hexf(-1.4426950408889634), vr(v[i]))
    for i in range(n): a("v_exp_f32 %s, %s", vr(t + i), vr(t + i))
    for i in range(n): a("v_add_f32 %s, 1.0, %s", vr(t + i), vr(t + i))
    for i in range(n): a("v_rcp_f32 %s, %s", vr(t + i), vr(t + i))
    for i in range(n): a("v_mul_f32 %s, %s, %s", vr(v[i]), vr(v[i]), vr(t + i))

def gen_gemm1_body(a, wg_sreg=2, BK=64, nbuf=3, nw=4):
    c = GemmCfg(2048, 1728, 640, 32 * nw, 128, BK, 640, 1728, nbuf, nw)
    R = Regs(1, 256); S = Regs(16, 54)
    srdA, srdB, srdO = 4, 8, 12
    sp = S.alloc(2, 2)
    a("s_load_dwordx2 %s, s[0:1], %d", sr(sp, 2), KARG['u'])
    sp2 = S.alloc(2, 2)
    a("s_load_dwordx2 %s, s[0:1], %d", sr(sp2, 2), KARG['w1'])
    sp3 = S.alloc(2, 2)
    a("s_load_dwordx2 %s, s[0:1], %d", sr(sp3, 2), KARG['ws'])
    a("s_waitcnt lgkmcnt(0)")
    srd(a, srdA, sr(sp), sr(sp + 1), 2048 * 640 * 2)
    srd(a, srdB, sr(sp2), sr(sp2 + 1), 640 * 1728 * 2)
    srd(a, srdO, sr(sp3), sr(sp3 + 1), 2048 * 1728 * 2)
    s_tm = S.alloc(); s_tn = S.alloc(); s_row0 = S.alloc(); s_col0 = S.alloc(); s_wave = S.alloc()
    tilesN = c.tilesN
    if nw == 4:
        tile_decode(a, wg_sreg, tilesN, s_tm, s_tn, s_row0)
        a("s_lshl_b32 %s, %s, 7", sr(s_row0), sr(s_tm))
    else:
        a("s_and_b32 %s, %s, 7", sr(s_tm), sr(wg_sreg)); a("s_lshr_b32 %s, %s, 3", sr(s_tn), sr(wg_sreg))
        a("s_lshl_b32 %s, %s, 8", sr(s_row0), sr(s_tm))
    a("s_lshl_b32 %s, %s, 7", sr(s_col0), sr(s_tn))
    r = emit_gemm_mainloop(a, c, R, S, srdA, srdB, s_row0, s_col0, s_wave)
    acc, vlane = r['acc'], r['vlane']
    s_t = S.alloc()
    a("s_barrier")
    a("s_lshl_b32 %s, %s, 6", sr(s_t), sr(r['s_wn']))
    a("s_add_u32 %s, %s, %s", sr(s_t), sr(s_t), sr(s_col0))
    Lskip = a.newlabel("g1skip")
    a("s_cmp_ge_u32 %s, %d", sr(s_t), c.N)
    a("s_cbranch_scc1 %s", Lskip)
    t0, t1, t2 = r['tmp']
    EP = 144
    vw_ = R.alloc(); vr_ = R.alloc(); voff = R.alloc()
    a("s_mul_i32 %s, %s, %d", sr(s_tn), sr(s_wave), 64 * EP)
    a("v_and_b32 %s, 31, %s", vr(t0), vr(vlane)); a("v_mul_u32_u24 %s, %d, %s", vr(t0), EP, vr(t0))
    a("v_lshrrev_b32 %s, 5, %s", vr(t1), vr(vlane)); a("v_lshlrev_b32 %s, 3, %s", vr(t1), vr(t1))
    a("v_add3_u32 %s, %s, %s, %s", vr(vw_), vr(t0), vr(t1), sr(s_tn))
    a("v_lshrrev_b32 %s, 3, %s", vr(t0), vr(vlane)); a("v_mul_u32_u24 %s, %d, %s", vr(t2), EP, vr(t0))
    a("v_and_b32 %s, 7, %s", vr(t1), vr(vlane)); a("v_lshlrev_b32 %s, 4, %s", vr(t1), vr(t1))
    a("v_add3_u32 %s, %s, %s, %s", vr(vr_), vr(t2), vr(t1), sr(s_tn))
    a("s_lshl_b32 %s, %s, 6", sr(s_tm), sr(r['s_wm']))
    a("s_add_u32 %s, %s, %s", sr(s_tm), sr(s_tm), sr(s_row0))
    a("v_add_u32 %s, %s, %s", vr(t0), sr(s_tm), vr(t0))
    a("v_mul_u32_u24 %s, %d, %s", vr(voff), 1728 * 2, vr(t0))
    a("s_lshl_b32 %s, %s, 1", sr(s_t), sr(s_t))
    a("v_add3_u32 %s, %s, %s, %s", vr(voff), vr(voff), vr(t1), sr(s_t))
    pk4 = r['scratch']; st8 = pk4 + 4
    for nt in range(c.NT):
        for mt in range(c.MT):
            for Q2 in range(2):
                regs = [acc[nt][mt] + 8 * Q2 + e for e in range(8)]
                for k in range(4):
                    bf16_round_pair(a, pk4 + k, regs[2 * k], regs[2 * k + 1])
                for k in range(4):
                    a("v_lshlrev_b32 %s, 16, %s", vr(regs[2 * k]), vr(pk4 + k)); a("v_and_b32 %s, 0xffff0000, %s", vr(regs[2 * k + 1]), vr(pk4 + k))
                if not os.environ.get("NOSILU"): emit_silu(a, regs, st8)
                for k in range(4):
                    bf16_round_pair(a, pk4 + k, regs[2 * k], regs[2 * k + 1])
                for h_ in range(2):
                    a("ds_write_b64 %s, %s offset:%d", vr(vw_), vr(pk4 + 2 * h_, 2), mt * 32 * EP + nt * 64 + 16 * (2 * Q2 + h_))
    a("s_waitcnt lgkmcnt(0)")
    ob = acc[0][0]
    for i in range(8):
        a("ds_read_b128 %s, %s offset:%d", vr(ob + 4 * i, 4), vr(vr_), i * 8 * EP)
    a("s_mov_b32 %s, 0", sr(s_tn))
    for i in range(8):
        a("s_waitcnt lgkmcnt(%d)", 7 - i)
        a("buffer_store_dwordx4 %s, %s, %s, %s offen", vr(ob + 4 * i, 4), vr(voff), sr(srdO, 4), sr(s_tn))
        if i < 7: a("s_add_u32 %s, %s, %d", sr(s_tn), sr(s_tn), 8 * 3456)
    a.label(Lskip)
    if os.environ.get("GTS"):
        a("s_waitcnt vmcnt(0) lgkmcnt(0)")
        a("s_memrealtime s[54:55]")
        a("s_load_dwordx2 s[4:5], s[0:1], 96")
        a("s_waitcnt lgkmcnt(0)")
        a("s_mov_b32 s6, 256"); a("s_mov_b32 s7, 0x00020000")
        a("s_cmp_eq_u32 %s, %s", sr(wg_sreg), os.environ.get("GTS"))
        a("s_cbranch_scc0 L_gts_skip")
        a("v_cmp_eq_u32 vcc, 0, v0")
        a("s_and_saveexec_b64 s[10:11], vcc")
        a("v_mov_b32 v2, 0")
        for i in range(21):
            a("s_sub_u32 s100, s%d, s96", 56 + 2 * i if i < 20 else 54)
            a("v_mov_b32 v3, s100")
            a("buffer_store_dword v3, v2, s[4:7], 0 offen offset:%d", 4 * i)
        a("s_mov_b64 exec, s[10:11]")
        a.label("L_gts_skip")
    return c, R.hi

def gen_gemm2_body(a, wg_sreg=2, BK=64, nbuf=3):
    c = GemmCfg(2048, 640, 1728, 128, 64, BK, 1728, 640, nbuf)
    R = Regs(1, 256); S = Regs(16, 100)
    srdA, srdB, srdO, srdW = 4, 8, 12, S.alloc(4, 4)
    sp = S.alloc(2, 2)
    a("s_load_dwordx2 %s, s[0:1], %d", sr(sp, 2), KARG['ws'])
    sp2 = S.alloc(2, 2)
    a("s_load_dwordx2 %s, s[0:1], %d", sr(sp2, 2), KARG['w2'])
    sp3 = S.alloc(2, 2)
    a("s_load_dwordx2 %s, s[0:1], %d", sr(sp3, 2), KARG['out'])
    a("s_waitcnt lgkmcnt(0)")
    srd(a, srdA, sr(sp), sr(sp + 1), 2048 * 1728 * 2)
    srd(a, srdB, sr(sp2), sr(sp2 + 1), 1728 * 640 * 2)
    srd(a, srdO, sr(sp3), sr(sp3 + 1), 2048 * 640 * 2)
    srd(a, srdW, sr(sp), sr(sp + 1), WS_G + 2048 * 4)
    s_tm = S.alloc(); s_tn = S.alloc(); s_row0 = S.alloc(); s_col0 = S.alloc(); s_wave = S.alloc()
    tilesN = c.tilesN
    tile_decode(a, wg_sreg, tilesN, s_tm, s_tn, s_row0)
    a("s_lshl_b32 %s, %s, 7", sr(s_row0), sr(s_tm))
    a("s_lshl_b32 %s, %s, 6", sr(s_col0), sr(s_tn))
    if os.environ.get("PFL2", "1") == "1":
        mk = R.mark()
        pv = R.alloc(); pt = R.alloc(); pd = R.alloc(4, 4); s_p = S.alloc()
        a("v_lshlrev_b32 %s, 4, v0", vr(pv))
        a("s_mul_i32 %s, %s, %d", sr(s_p), sr(s_row0), 3456)
        a("s_mul_i32 %s, %s, %d", sr(s_wave), sr(s_tn), 44240)
        a("s_add_u32 %s, %s, %s", sr(s_p), sr(s_p), sr(s_wave))
        for i in range(11):
            a("buffer_load_dwordx4 %s, %s, %s, %s offen", vr(pd, 4), vr(pv), sr(srdA, 4), sr(s_p))
            if i < 10: a("s_add_u32 %s, %s, 4096", sr(s_p), sr(s_p))
        a("v_lshrrev_b32 %s, 3, v0", vr(pv)); a("v_mul_u32_u24 %s, 1280, %s", vr(pv), vr(pv))
        a("v_and_b32 %s, 7, v0", vr(pt)); a("v_lshl_add_u32 %s, %s, 4, %s", vr(pv), vr(pt), vr(pv))
        a("s_and_b32 %s, %s, 1", sr(s_p), sr(s_tm)); a("s_mul_i32 %s, %s, %d", sr(s_p), sr(s_p), 864 * 1280)
        a("s_lshl_b32 %s, %s, 1", sr(s_wave), sr(s_col0)); a("s_add_u32 %s, %s, %s", sr(s_p), sr(s_p), sr(s_wave))
        for i in range(27):
            a("buffer_load_dwordx4 %s, %s, %s, %s offen", vr(pd, 4), vr(pv), sr(srdB, 4), sr(s_p))
            if i < 26: a("s_add_u32 %s, %s, %d", sr(s_p), sr(s_p), 32 * 1280)
    PITCH = 272
    at4 = [R.alloc(4, 4) for _ in range(4)]; atw = [R.alloc() for _ in range(4)]
    mk = R.mark()
    vtid = R.alloc(); va = R.alloc(); vl = R.alloc(); t0 = R.alloc(); t1 = R.alloc()
    for j in range(4):
        a("v_add_u32 %s, %d, v0", vr(vtid), j * 256)
        a("v_lshrrev_b32 %s, 4, %s", vr(va), vr(vtid))
        a("v_and_b32 %s, 15, %s", vr(vl), vr(vtid))
        a("v_add_u32 %s, %s, %s", vr(t0), sr(s_col0), vr(va))
        a("v_lshlrev_b32 %s, 12, %s", vr(t0), vr(t0))
        a("v_lshl_add_u32 %s, %s, 4, %s", vr(t0), vr(vl), vr(t0))
        a("s_lshl_b32 %s, %s, 1", sr(s_tm), sr(s_row0))
        a("s_add_u32 %s, %s, 0x%x", sr(s_tm), sr(s_tm), WS_AT)
        a("buffer_load_dwordx4 %s, %s, %s, %s offen", vr(at4[j], 4), vr(t0), sr(srdW, 4), sr(s_tm))
        a("s_mov_b32 %s, %d", sr(s_tn), PITCH)
        a("v_mul_lo_u32 %s, %s, %s", vr(t1), vr(va), sr(s_tn))
        a("v_lshl_add_u32 %s, %s, 4, %s", vr(atw[j]), vr(vl), vr(t1))
    R.release(mk)
    r = emit_gemm_mainloop(a, c, R, S, srdA, srdB, s_row0, s_col0, s_wave)
    acc, vlane = r['acc'], r['vlane']
    t0, t1, t2 = r['tmp']
    a("s_barrier")
    for j in range(4):
        a("ds_write_b128 %s, %s", vr(atw[j]), vr(at4[j], 4))
    a("s_waitcnt lgkmcnt(0)")
    a("s_barrier")
    vat = R.alloc()
    a("v_lshrrev_b32 %s, 5, %s", vr(t0), vr(vlane)); a("v_lshlrev_b32 %s, 2, %s", vr(t0), vr(t0))
    a("v_lshrrev_b32 %s, 2, %s", vr(t1), vr(vlane)); a("v_and_b32 %s, 3, %s", vr(t1), vr(t1))
    a("v_add_u32 %s, %s, %s", vr(t0), vr(t0), vr(t1))
    a("s_lshl_b32 %s, %s, 5", sr(s_tm), sr(r['s_wn']))
    a("v_add_u32 %s, %s, %s", vr(t0), sr(s_tm), vr(t0))
    a("s_mov_b32 %s, %d", sr(s_tn), PITCH)
    a("v_mul_lo_u32 %s, %s, %s", vr(vat), vr(t0), sr(s_tn))
    a("v_lshrrev_b32 %s, 4, %s", vr(t0), vr(vlane)); a("v_and_b32 %s, 1, %s", vr(t0), vr(t0)); a("v_lshlrev_b32 %s, 5, %s", vr(t0), vr(t0))
    a("v_and_b32 %s, 3, %s", vr(t1), vr(vlane)); a("v_lshl_add_u32 %s, %s, 3, %s", vr(t0), vr(t1), vr(t0))
    a("s_lshl_b32 %s, %s, 7", sr(s_tm), sr(r['s_wm']))
    a("v_add3_u32 %s, %s, %s, %s", vr(vat), vr(vat), vr(t0), sr(s_tm))
    voff = R.alloc(); vg = [R.alloc() for _ in range(c.MT)]
    a("v_and_b32 %s, 31, %s", vr(t0), vr(vlane))
    a("s_lshl_b32 %s, %s, 6", sr(s_tm), sr(r['s_wm']))
    a("s_add_u32 %s, %s, %s", sr(s_tm), sr(s_tm), sr(s_row0))
    a("v_add_u32 %s, %s, %s", vr(t0), sr(s_tm), vr(t0))
    a("s_mov_b32 %s, 0x%x", sr(s_tm), WS_G)
    for mt in range(c.MT):
        a("v_lshlrev_b32 %s, 2, %s", vr(t1), vr(t0))
        a("buffer_load_dword %s, %s, %s, %s offen offset:%d", vr(vg[mt]), vr(t1), sr(srdW, 4), sr(s_tm), mt * 128)
    EP = 80; EB = 20480
    vw_ = R.alloc(); vr_ = R.alloc()
    a("s_mul_i32 %s, %s, %d", sr(s_tn), sr(s_wave), 64 * EP); a("s_add_u32 %s, %s, %d", sr(s_tn), sr(s_tn), EB)
    a("v_and_b32 %s, 31, %s", vr(t0), vr(vlane)); a("v_mul_u32_u24 %s, %d, %s", vr(t0), EP, vr(t0))
    a("v_lshrrev_b32 %s, 5, %s", vr(t1), vr(vlane)); a("v_lshlrev_b32 %s, 3, %s", vr(t1), vr(t1))
    a("v_add3_u32 %s, %s, %s, %s", vr(vw_), vr(t0), vr(t1), sr(s_tn))
    a("v_lshrrev_b32 %s, 2, %s", vr(t0), vr(vlane)); a("v_mul_u32_u24 %s, %d, %s", vr(t2), EP, vr(t0))
    a("v_and_b32 %s, 3, %s", vr(t1), vr(vlane)); a("v_lshlrev_b32 %s, 4, %s", vr(t1), vr(t1))
    a("v_add3_u32 %s, %s, %s, %s", vr(vr_), vr(t2), vr(t1), sr(s_tn))
    a("s_lshl_b32 %s, %s, 6", sr(s_tm), sr(r['s_wm']))
    a("s_add_u32 %s, %s, %s", sr(s_tm), sr(s_tm), sr(s_row0))
    a("v_add_u32 %s, %s, %s", vr(t0), sr(s_tm), vr(t0))
    a("v_mul_u32_u24 %s, %d, %s", vr(voff), 640 * 2, vr(t0))
    a("s_lshl_b32 %s, %s, 6", sr(s_tn), sr(r['s_wn']))
    a("s_lshl_b32 %s, %s, 1", sr(s_tm), sr(s_col0))
    a("s_add_u32 %s, %s, %s", sr(s_tm), sr(s_tm), sr(s_tn))
    a("v_add3_u32 %s, %s, %s, %s", vr(voff), vr(voff), vr(t1), sr(s_tm))
    av = R.alloc(8, 4); pk = R.alloc(2, 2); w = R.alloc(4); g1 = R.alloc()
    a("s_waitcnt vmcnt(0)")
    for mt in range(c.MT):
        for Q in range(4):
            a("ds_read_b64_tr_b16 %s, %s offset:%d", vr(av + 2 * (Q % 4), 2), vr(vat), Q * 8 * PITCH + mt * 64)
        a("v_sub_f32 %s, 1.0, %s", vr(g1), vr(vg[mt]))
        a("v_cvt_pk_bf16_f32 %s, %s, %s", vr(g1), vr(g1), vr(g1))
        a("v_lshlrev_b32 %s, 16, %s", vr(g1), vr(g1))
        a("s_waitcnt lgkmcnt(0)")
        for Q in range(4):
            regs = [acc[0][mt] + 4 * Q + e for e in range(4)]
            bf16_round_pair(a, pk, regs[0], regs[1]); bf16_round_pair(a, pk + 1, regs[2], regs[3])
            a("v_lshlrev_b32 %s, 16, %s", vr(regs[0]), vr(pk)); a("v_and_b32 %s, 0xffff0000, %s", vr(regs[1]), vr(pk))
            a("v_lshlrev_b32 %s, 16, %s", vr(regs[2]), vr(pk + 1)); a("v_and_b32 %s, 0xffff0000, %s", vr(regs[3]), vr(pk + 1))
            a("v_lshlrev_b32 %s, 16, %s", vr(w), vr(av + 2 * Q)); a("v_and_b32 %s, 0xffff0000, %s", vr(w + 1), vr(av + 2 * Q))
            a("v_lshlrev_b32 %s, 16, %s", vr(w + 2), vr(av + 2 * Q + 1)); a("v_and_b32 %s, 0xffff0000, %s", vr(w + 3), vr(av + 2 * Q + 1))
            for e in range(4):
                a("v_mul_f32 %s, %s, %s", vr(w + e), vr(vg[mt]), vr(w + e))
                a("v_mul_f32 %s, %s, %s", vr(regs[e]), vr(g1), vr(regs[e]))
            bf16_round_pair(a, pk, w, w + 1); bf16_round_pair(a, pk + 1, w + 2, w + 3)
            a("v_lshlrev_b32 %s, 16, %s", vr(w), vr(pk)); a("v_and_b32 %s, 0xffff0000, %s", vr(w + 1), vr(pk))
            a("v_lshlrev_b32 %s, 16, %s", vr(w + 2), vr(pk + 1)); a("v_and_b32 %s, 0xffff0000, %s", vr(w + 3), vr(pk + 1))
            bf16_round_pair(a, pk, regs[0], regs[1]); bf16_round_pair(a, pk + 1, regs[2], regs[3])
            a("v_lshlrev_b32 %s, 16, %s", vr(regs[0]), vr(pk)); a("v_and_b32 %s, 0xffff0000, %s", vr(regs[1]), vr(pk))
            a("v_lshlrev_b32 %s, 16, %s", vr(regs[2]), vr(pk + 1)); a("v_and_b32 %s, 0xffff0000, %s", vr(regs[3]), vr(pk + 1))
            for e in range(4):
                a("v_add_f32 %s, %s, %s", vr(w + e), vr(w + e), vr(regs[e]))
            bf16_round_pair(a, pk, w, w + 1); bf16_round_pair(a, pk + 1, w + 2, w + 3)
            a("ds_write_b64 %s, %s offset:%d", vr(vw_), vr(pk, 2), mt * 32 * EP + 16 * Q)
    a("s_waitcnt lgkmcnt(0)")
    ob = acc[0][0]
    for i in range(4):
        a("ds_read_b128 %s, %s offset:%d", vr(ob + 4 * i, 4), vr(vr_), i * 16 * EP)
    a("s_mov_b32 %s, 0", sr(s_tn))
    for i in range(4):
        a("s_waitcnt lgkmcnt(%d)", 3 - i)
        a("buffer_store_dwordx4 %s, %s, %s, %s offen", vr(ob + 4 * i, 4), vr(voff), sr(srdO, 4), sr(s_tn))
        if i < 3: a("s_add_u32 %s, %s, %d", sr(s_tn), sr(s_tn), 16 * 1280)
    return c, R.hi

def gen_gate_body(a, wg_sreg, nthreads=256):
    R = Regs(1, 64); S = Regs(16, 100)
    srdX, srdG, srdW = 4, 8, 12
    sp = S.alloc(2, 2); sp2 = S.alloc(2, 2); sp3 = S.alloc(2, 2)
    a("s_load_dwordx2 %s, s[0:1], %d", sr(sp, 2), KARG['u'])
    a("s_load_dwordx2 %s, s[0:1], %d", sr(sp2, 2), KARG['gw'])
    a("s_load_dwordx2 %s, s[0:1], %d", sr(sp3, 2), KARG['ws'])
    a("s_waitcnt lgkmcnt(0)")
    srd(a, srdX, sr(sp), sr(sp + 1), 2048 * 640 * 2)
    srd(a, srdG, sr(sp2), sr(sp2 + 1), 640 * 2)
    srd(a, srdW, sr(sp3), sr(sp3 + 1), WS_G + 2048 * 4)
    vl = R.alloc(); vw = R.alloc(); vo = R.alloc(); t = R.alloc(4)
    a("v_and_b32 %s, 63, v0", vr(vl))
    a("v_lshrrev_b32 %s, 6, v0", vr(vw))
    s_r = S.alloc()
    a("s_lshl_b32 %s, %s, %d", sr(s_r), sr(wg_sreg), 3 if nthreads == 512 else 2)
    a("v_add_u32 %s, %s, %s", vr(vw), sr(s_r), vr(vw))
    a("v_mul_u32_u24 %s, %d, %s", vr(vo), 1280, vr(vw))
    a("v_lshl_add_u32 %s, %s, 2, %s", vr(vo), vr(vl), vr(vo))
    a("v_lshlrev_b32 %s, 2, %s", vr(t), vr(vl))
    xs = R.alloc(5); gs = R.alloc(5)
    for j in range(5):
        a("buffer_load_dword %s, %s, %s, 0 offen offset:%d", vr(xs + j), vr(vo), sr(srdX, 4), j * 256)
        a("buffer_load_dword %s, %s, %s, 0 offen offset:%d", vr(gs + j), vr(t), sr(srdG, 4), j * 256)
    acc = R.alloc()
    a("v_mov_b32 %s, 0", vr(acc))
    a("s_waitcnt vmcnt(0)")
    for j in range(5):
        a("v_lshlrev_b32 %s, 16, %s", vr(t), vr(xs + j)); a("v_lshlrev_b32 %s, 16, %s", vr(t + 1), vr(gs + j))
        a("v_and_b32 %s, 0xffff0000, %s", vr(t + 2), vr(xs + j)); a("v_and_b32 %s, 0xffff0000, %s", vr(t + 3), vr(gs + j))
        a("v_mul_f32 %s, %s, %s", vr(t), vr(t), vr(t + 1)); a("v_mul_f32 %s, %s, %s", vr(t + 2), vr(t + 2), vr(t + 3))
        a("v_cvt_pk_bf16_f32 %s, %s, %s", vr(t), vr(t), vr(t + 2))
        a("v_lshlrev_b32 %s, 16, %s", vr(t + 1), vr(t)); a("v_and_b32 %s, 0xffff0000, %s", vr(t + 2), vr(t))
        a("v_add_f32 %s, %s, %s", vr(acc), vr(acc), vr(t + 1)); a("v_add_f32 %s, %s, %s", vr(acc), vr(acc), vr(t + 2))
    for off in (0x041F, 0x081F, 0x101F, 0x201F, 0x401F):
        a("ds_swizzle_b32 %s, %s offset:0x%x", vr(t), vr(acc), off)
        a("s_waitcnt lgkmcnt(0)")
        a("v_add_f32 %s, %s, %s", vr(acc), vr(acc), vr(t))
    s_a = S.alloc(); s_b = S.alloc()
    a("s_nop 1")
    a("v_readlane_b32 %s, %s, 0", sr(s_a), vr(acc))
    a("v_readlane_b32 %s, %s, 32", sr(s_b), vr(acc))
    a("s_nop 3")
    a("v_mov_b32 %s, %s", vr(t), sr(s_a))
    a("v_add_f32 %s, %s, %s", vr(t), sr(s_b), vr(t))
    a("v_cvt_pk_bf16_f32 %s, %s, %s", vr(t), vr(t), vr(t)); a("v_lshlrev_b32 %s, 16, %s", vr(t), vr(t))
    a("v_mul_f32 %s, %s, %s", vr(t), hexf(-1.4426950408889634), vr(t))
    a("v_exp_f32 %s, %s", vr(t), vr(t)); a("s_nop 0")
    a("v_add_f32 %s, 1.0, %s", vr(t), vr(t))
    a("v_rcp_f32 %s, %s", vr(t), vr(t)); a("s_nop 0")
    a("v_cvt_pk_bf16_f32 %s, %s, %s", vr(t), vr(t), vr(t)); a("v_lshlrev_b32 %s, 16, %s", vr(t), vr(t))
    a("v_lshlrev_b32 %s, 2, %s", vr(vw), vr(vw))
    a("v_cmp_eq_u32 vcc, 0, %s", vr(vl))
    s_e = S.alloc(2, 2)
    a("s_and_saveexec_b64 %s, vcc", sr(s_e, 2))
    a("s_mov_b32 %s, 0x%x", sr(s_a), WS_G)
    a("buffer_store_dword %s, %s, %s, %s offen", vr(t), vr(vw), sr(srdW, 4), sr(s_a))
    a("s_mov_b64 exec, %s", sr(s_e, 2))
    if os.environ.get("PFW2", "1") == "1":
        spw = S.alloc(2, 2); srdP = S.alloc(4, 4); pf = R.alloc(8, 4)
        a("s_load_dwordx2 %s, s[0:1], %d", sr(spw, 2), KARG['w2'])
        a("s_waitcnt lgkmcnt(0)")
        srd(a, srdP, sr(spw), sr(spw + 1), 1728 * 640 * 2)
        per = 4320 if nthreads == 256 else 8640
        a("s_mul_i32 %s, %s, %d", sr(s_a), sr(wg_sreg), per)
        a("v_lshlrev_b32 %s, 4, v0", vr(t))
        a("buffer_load_dwordx4 %s, %s, %s, %s offen", vr(pf, 4), vr(t), sr(srdP, 4), sr(s_a))
        a("v_cmp_gt_u32 vcc, %d, v0", (per - nthreads * 16) // 16)
        a("s_and_saveexec_b64 %s, vcc", sr(s_e, 2))
        a("buffer_load_dwordx4 %s, %s, %s, %s offen offset:%d", vr(pf + 4, 4), vr(t), sr(srdP, 4), sr(s_a), nthreads * 16)
        a("s_mov_b64 exec, %s", sr(s_e, 2))
        a("s_waitcnt vmcnt(0)")
    return R.hi
```
